```python
import torch

def _softmax(x, axis=-1):
    return torch.softmax(x, dim=axis)
def _gelu(x):
    return torch.nn.functional.gelu(x, approximate="tanh")
def _silu(x):
    return torch.nn.functional.silu(x)
def _sigmoid(x):
    return torch.sigmoid(x)
def _layernorm(x, axis=-1, eps=1e-5):
    m = x.mean(dim=axis, keepdim=True)
    v = x.var(dim=axis, keepdim=True, unbiased=False)
    return (x - m) / torch.sqrt(v + eps)
def _scatter_add(tgt, idx, src, axis=0):
    return tgt.clone().index_add_(axis, idx, src)
def _segment_sum(src, seg, n):
    out = torch.zeros((n,) + src.shape[1:], dtype=src.dtype)
    return out.index_add_(0, seg, src)
def _pad(x, pw):
    flat = tuple(v for pair in reversed(pw) for v in pair)
    return torch.nn.functional.pad(x, flat)

kernel_name = 'parallel_sum__sliding_block__swiglu_ffn__prompt'

def setup_inputs():

    _w = (lambda a: (lambda t: t.to(torch.bfloat16) if t.is_floating_point() else t)(torch.as_tensor(a)))
    def _A_setup():
        B, S, D = 1, 2048, 640
        return {
            "x": _w((lambda *s: torch.randn(*s, dtype=torch.bfloat16) * 0.05)(B, S, D)),
            "wqkv": _w((lambda *s: torch.randn(*s, dtype=torch.bfloat16) * 0.05)(D, 3 * D)),
            "wo": _w((lambda *s: torch.randn(*s, dtype=torch.bfloat16) * 0.05)(D, D)),
        }
    _A_in = _A_setup()

    def _B_setup():
        B, S, D, F = 1, 2048, 640, 1536
        return {
            "x": _w((lambda *s: torch.randn(*s, dtype=torch.bfloat16) * 0.05)(B, S, D)),
            "w_gate": _w((lambda *s: torch.randn(*s, dtype=torch.bfloat16) * 0.05)(D, F)),
            "w_up": _w((lambda *s: torch.randn(*s, dtype=torch.bfloat16) * 0.05)(D, F)),
            "w_down": _w((lambda *s: torch.randn(*s, dtype=torch.bfloat16) * 0.05)(F, D)),
        }
    _B_in = _B_setup()

    return {
        "A_x": _A_in["x"],
        "A_wqkv": _A_in["wqkv"],
        "A_wo": _A_in["wo"],
        "B_x": _B_in["x"],
        "B_w_gate": _B_in["w_gate"],
        "B_w_up": _B_in["w_up"],
        "B_w_down": _B_in["w_down"],
    }

def reference(A_x, A_wqkv, A_wo, B_x, B_w_gate, B_w_up, B_w_down):
    def _A_ref(x, wqkv, wo):
        B, S, D = x.shape
        H = 32; Dh = D // H; W = 256
        qkv = (lambda x, *d: x.permute(*d))((x @ wqkv).reshape(B, S, 3, H, Dh), 2, 0, 3, 1, 4)
        q, k, v = qkv[0], qkv[1], qkv[2]
        scores = torch.einsum("bhqd,bhkd->bhqk", q, k) * (Dh ** -0.5)
        idx = torch.arange(S)
        mask = (idx[:, None] - idx[None, :] >= 0) & (idx[:, None] - idx[None, :] < W)
        scores = torch.where(mask[None, None], scores, -1e9)
        p = _softmax(scores, axis=-1)
        o = torch.einsum("bhqk,bhkd->bhqd", p, v)
        return (lambda x, *d: x.permute(*d))(o, 0, 2, 1, 3).reshape(B, S, D) @ wo

    def _B_ref(x, w_gate, w_up, w_down):
        g = _silu(x @ w_gate)
        u = x @ w_up
        return (g * u) @ w_down

    x = A_x
    xn = _layernorm(x, axis=-1)
    return x + _A_ref(xn, A_wqkv, A_wo) + _B_ref(xn, B_w_gate, B_w_up, B_w_down)
```

```python
class K:
    def __init__(self):
        self.out = []
        self.vm = []
        self.lg = []
        self.lbl = 0
    def __call__(self, s):
        for line in s.strip('\n').split('\n'):
            self.out.append('    ' + line.strip())
    def raw(self, s):
        self.out.append(s)
    def label(self, name):
        self.out.append(name + ':')
    def newlabel(self, base='L'):
        self.lbl += 1
        return f'{base}_{id(self) & 0xffff:x}_{self.lbl}'
    def vmem(self, s, tag=None):
        self(s)
        self.vm.append(tag)
    def wait_vm(self, tag):
        idx = [i for i, t in enumerate(self.vm) if t == tag]
        if not idx:
            return
        last = idx[-1]
        n = len(self.vm) - 1 - last
        assert n <= 63, n
        self(f's_waitcnt vmcnt({n})')
        self.vm = self.vm[last + 1:]
    def wait_vm_all(self):
        self('s_waitcnt vmcnt(0)')
        self.vm = []
    def lds(self, s, tag=None):
        self(s)
        self.lg.append(tag)
    def wait_lg(self, tag):
        idx = [i for i, t in enumerate(self.lg) if t == tag]
        if not idx:
            return
        last = idx[-1]
        n = len(self.lg) - 1 - last
        if n > 15:
            n = 15
        self(f's_waitcnt lgkmcnt({n})')
        self.lg = self.lg[len(self.lg) - n:] if n else []
    def wait_lg_all(self):
        self('s_waitcnt lgkmcnt(0)')
        self.lg = []
    def text(self):
        return '\n'.join(self.out) + '\n'

def vr(b, n=1):
    return f'v{b}' if n == 1 else f'v[{b}:{b+n-1}]'
def ar(b, n=1):
    return f'a{b}' if n == 1 else f'a[{b}:{b+n-1}]'
def sr(b, n=1):
    return f's{b}' if n == 1 else f's[{b}:{b+n-1}]'

def kernel_header(name):
    return f'''.globl {name}
.p2align 8
.type {name},@function
{name}:
'''

def kernel_desc(name, vgpr, sgpr, accum):
    return f'''.amdhsa_kernel {name}
  .amdhsa_next_free_vgpr {vgpr}
  .amdhsa_next_free_sgpr {sgpr}
  .amdhsa_accum_offset {accum}
  .amdhsa_group_segment_fixed_size 0
  .amdhsa_kernarg_size 80
  .amdhsa_user_sgpr_count 2
  .amdhsa_user_sgpr_kernarg_segment_ptr 1
  .amdhsa_system_sgpr_workgroup_id_x 1
.end_amdhsa_kernel
'''
```

```python
import sys
from asmlib import *

XN = 0x0000000
QP = 0x0400000
KP = 0x0800000
VT = 0x0C00000
HH = 0x1000000
OO = 0x1800000
WS_BYTES = 268435456

LOG2E = 1.4426950408889634

def f32hex(x):
    import struct
    return '0x%08x' % struct.unpack('<I', struct.pack('<f', x))[0]

def ws_srd(k, sbase, sptr):
    k(f'''
    s_mov_b32 s{sbase}, s{sptr}
    s_and_b32 s{sbase+1}, s{sptr+1}, 0xffff
    s_mov_b32 s{sbase+2}, {WS_BYTES}
    s_mov_b32 s{sbase+3}, 0x00020000
    ''')

def gen_ln():
    k = K()
    k.raw(kernel_header('ln_kernel'))
    k('''
    s_cmp_ge_u32 s2, 128
    s_cbranch_scc1 L_ln_done
    s_load_dwordx2 s[4:5], s[0:1], 0
    s_load_dwordx2 s[6:7], s[0:1], 72
    v_lshrrev_b32 v1, 4, v0
    s_lshl_b32 s3, s2, 4
    v_add_u32 v1, s3, v1
    v_mul_u32_u24 v1, 1280, v1
    v_and_b32 v2, 15, v0
    v_lshl_add_u32 v1, v2, 4, v1
    s_waitcnt lgkmcnt(0)
    ''')
    for c in range(5):
        k(f'global_load_dwordx4 v[{4+4*c}:{7+4*c}], v1, s[4:5] offset:{256*c}')
    k('s_waitcnt vmcnt(0)')
    for j in range(20):
        k(f'v_lshlrev_b32 v{32+2*j}, 16, v{4+j}')
        k(f'v_and_b32 v{33+2*j}, 0xffff0000, v{4+j}')
    for a in range(4):
        k(f'v_add_f32 v{24+a}, v{32+a}, v{36+a}')
    for j in range(8, 40, 4):
        for a in range(4):
            k(f'v_add_f32 v{24+a}, v{24+a}, v{32+j+a}')
    k('''
    v_add_f32 v24, v24, v25
    v_add_f32 v26, v26, v27
    v_add_f32 v24, v24, v26
    ''')
    def dpp_reduce(r):
        for sh in (8, 4, 2, 1):
            k('s_nop 1')
            k(f'v_add_f32_dpp v{r}, v{r}, v{r} row_ror:{sh} row_mask:0xf bank_mask:0xf')
    dpp_reduce(24)
    k(f'v_mul_f32 v24, {f32hex(1.0/640)}, v24')
    for a in range(4):
        k(f'v_sub_f32 v72, v{32+a}, v24')
        k(f'v_mul_f32 v{26+a}, v72, v72')
    for j in range(4, 40):
        k(f'v_sub_f32 v72, v{32+j}, v24')
        k(f'v_fmac_f32 v{26+(j&3)}, v72, v72')
    k('''
    v_add_f32 v26, v26, v27
    v_add_f32 v28, v28, v29
    v_add_f32 v26, v26, v28
    ''')
    dpp_reduce(26)
    k(f'v_mul_f32 v26, {f32hex(1.0/640)}, v26')
    k(f'''
    v_cvt_pk_bf16_f32 v27, v24, v26
    v_lshlrev_b32 v24, 16, v27            ; m_b
    v_and_b32 v26, 0xffff0000, v27        ; var_b
    v_add_f32 v26, {f32hex(1e-5)}, v26
    v_cvt_pk_bf16_f32 v27, v26, v26
    v_lshlrev_b32 v26, 16, v27
    v_sqrt_f32 v26, v26
    s_nop 0
    v_cvt_pk_bf16_f32 v27, v26, v26
    v_lshlrev_b32 v26, 16, v27
    v_rcp_f32 v26, v26
    ''')
    for j in range(20):
        a, b = 32 + 2 * j, 33 + 2 * j
        k(f'''
        v_sub_f32 v{a}, v{a}, v24
        v_sub_f32 v{b}, v{b}, v24
        v_cvt_pk_bf16_f32 v72, v{a}, v{b}
        v_lshlrev_b32 v{a}, 16, v72
        v_and_b32 v{b}, 0xffff0000, v72
        v_mul_f32 v{a}, v{a}, v26
        v_mul_f32 v{b}, v{b}, v26
        v_cvt_pk_bf16_f32 v{4+j}, v{a}, v{b}
        ''')
    for c in range(5):
        k(f'global_store_dwordx4 v1, v[{4+4*c}:{7+4*c}], s[6:7] offset:{256*c}')
    k('s_waitcnt vmcnt(0)')
    k.label('L_ln_done')
    k('s_endpgm')
    return k.text(), kernel_desc('ln_kernel', 80, 16, 80)

K1_NCH = 10
K1_RING = 4
K1_BUF = 20480
ACC0 = 96
WF0 = 64
WFR = 6
def acc(t, sub):
    return ACC0 + (t * 2 + sub) * 16

def k1_mainloop(k, vmode):
    PD = 4
    nfr = K1_NCH * 20
    def frag_read(n):
        c, r = divmod(n, 20)
        s, t = divmod(r, 5)
        buf = c % K1_RING
        base = 52 if buf < 2 else 53
        off = (buf & 1) * K1_BUF + (8 * s) * 320 + t * 64
        d = WF0 + (n % WFR) * 4
        k.lds(f'ds_read_b64_tr_b16 v[{d}:{d+1}], v{base} offset:{off}', ('fr', n))
        k.lds(f'ds_read_b64_tr_b16 v[{d+2}:{d+3}], v{base} offset:{off + 4*320}', ('fr', n))
    def issue_A(c):
        st = (c % 3) * 32
        for sub in range(2):
            for s in range(4):
                d = st + (sub * 4 + s) * 4
                k.vmem(f'global_load_dwordx4 a[{d}:{d+3}], v{50+sub}, s[4:5] offset:{c*128 + s*16}', ('A', c))
    def issue_DMA(c):
        buf = c % K1_RING
        for j in range(5):
            k(f's_add_u32 m0, s21, {buf*K1_BUF + j*1024}')
            k('s_nop 0')
            k.vmem(f'global_load_lds_dwordx4 v[{40+2*j}:{41+2*j}], off', ('D', c))
            k(f'v_add_co_u32 v{40+2*j}, vcc, s20, v{40+2*j}')
            k(f'v_addc_co_u32 v{41+2*j}, vcc, 0, v{41+2*j}, vcc')
    issue_DMA(0); issue_A(0); issue_DMA(1); issue_A(1); issue_DMA(2)
    k.wait_vm(('D', 0))
    k('s_barrier')
    for n in range(PD):
        frag_read(n)
    for c in range(K1_NCH):
        k.wait_vm(('A', c))
        if c + 2 < K1_NCH:
            issue_A(c + 2)
        for s in range(4):
            for t in range(5):
                n = c * 20 + s * 5 + t
                if n + PD < nfr:
                    frag_read(n + PD)
                k.wait_lg(('fr', n))
                wf = WF0 + (n % WFR) * 4
                for sub in range(2):
                    xa = (c % 3) * 32 + (sub * 4 + s) * 4
                    a = acc(t, sub)
                    cin = '0' if (c == 0 and s == 0) else f'v[{a}:{a+15}]'
                    if not vmode:
                        k(f'v_mfma_f32_32x32x16_bf16 v[{a}:{a+15}], v[{wf}:{wf+3}], a[{xa}:{xa+3}], {cin}')
                    else:
                        k(f'v_mfma_f32_32x32x16_bf16 v[{a}:{a+15}], a[{xa}:{xa+3}], v[{wf}:{wf+3}], {cin}')
            if s == 1 and c + 1 < K1_NCH:
                k.wait_vm(('D', c + 1))
                k('s_barrier')
                if c + 3 < K1_NCH:
                    issue_DMA(c + 3)
    k('s_nop 15')
    k('s_nop 3')

def gen_k1():
    k = K()
    k.raw(kernel_header('gemm1_kernel'))
    k('''
    s_cmp_ge_u32 s2, 256
    s_cbranch_scc1 L_k1_done
    s_load_dwordx2 s[6:7], s[0:1], 72      ; ws
    s_load_dwordx2 s[16:17], s[0:1], 8     ; wqkv
    s_load_dwordx4 s[24:27], s[0:1], 32
    s_and_b32 s13, s2, 7
    s_lshl_b32 s13, s13, 2
    s_lshr_b32 s3, s2, 3
    s_and_b32 s3, s3, 3
    s_add_u32 s13, s13, s3                 ; ng
    s_lshr_b32 s12, s2, 5                  ; mb
    v_lshrrev_b32 v1, 6, v0
    v_and_b32 v2, 63, v0                   ; lane
    s_nop 0
    v_readfirstlane_b32 s14, v1            ; wave
    s_mul_i32 s21, s14, 5120
    s_lshl_b32 s22, s12, 8
    s_lshl_b32 s23, s14, 6
    s_add_u32 s22, s22, s23
    v_and_b32 v3, 31, v2
    v_add_u32 v3, s22, v3
    v_mul_u32_u24 v50, 1280, v3
    v_lshrrev_b32 v4, 5, v2                ; v4 = h
    v_lshl_add_u32 v50, v4, 6, v50
    v_add_u32 v51, 40960, v50
    v_mul_u32_u24 v52, 10240, v4
    v_and_b32 v5, 15, v2
    v_lshrrev_b32 v5, 2, v5
    v_mul_u32_u24 v5, 320, v5
    v_add_u32 v52, v52, v5
    v_lshrrev_b32 v5, 4, v2
    v_and_b32 v5, 1, v5
    v_lshl_add_u32 v52, v5, 5, v52
    v_and_b32 v5, 3, v2
    v_lshl_add_u32 v52, v5, 3, v52
    v_add_u32 v53, 40960, v52
    s_waitcnt lgkmcnt(0)
    ''')
    ws_srd(k, 8, 6)
    k(f'''
    s_add_u32 s4, s6, {XN}
    s_addc_u32 s5, s7, 0
    ''')
    k('''
    s_mul_i32 s23, s14, 320
    v_add_u32 v6, s23, v2                  ; p for j=0
    s_cmp_ge_u32 s13, 12
    s_cbranch_scc1 L_k1_ffn_addr
    s_mul_i32 s23, s13, 320                ; ncol0*2
    s_add_u32 s16, s16, s23
    s_addc_u32 s17, s17, 0
    s_mov_b32 s20, 245760                  ; 64*3840
    ''')
    for j in range(5):
        k(f'''
        v_add_u32 v7, {64*j}, v6
        v_mul_u32_u24 v8, 3277, v7
        v_lshrrev_b32 v8, 16, v8           ; kk
        v_mul_u32_u24 v9, 20, v8
        v_sub_u32 v9, v7, v9               ; c
        v_mul_u32_u24 v8, 3840, v8
        v_lshl_add_u32 v8, v9, 4, v8
        v_mov_b32 v{41+2*j}, s17
        v_add_co_u32 v{40+2*j}, vcc, s16, v8
        v_addc_co_u32 v{41+2*j}, vcc, 0, v{41+2*j}, vcc
        ''')
    k('''
    s_branch L_k1_addr_done
    ''')
    k.label('L_k1_ffn_addr')
    k('''
    s_sub_u32 s28, s13, 12
    s_mul_i32 s29, s28, 5
    s_lshl_b32 s30, s28, 2
    s_add_u32 s30, s30, 15                 ; 80 + 4(g-16) - 1 = 4g + 15
    s_cmp_ge_u32 s28, 16
    s_cselect_b32 s29, s30, s29
    s_cselect_b32 s31, 1, 0
    s_lshl_b32 s29, s29, 5
    s_add_u32 s24, s24, s29
    s_addc_u32 s25, s25, 0
    s_add_u32 s26, s26, s29
    s_addc_u32 s27, s27, 0
    s_mov_b32 s20, 196608                  ; 64*3072
    v_mov_b32 v10, s24
    v_mov_b32 v11, s25
    v_mov_b32 v12, s26
    v_mov_b32 v13, s27
    ''')
    for j in range(5):
        k(f'''
        v_add_u32 v7, {64*j}, v6
        v_mul_u32_u24 v8, 3277, v7
        v_lshrrev_b32 v8, 16, v8           ; kk
        v_mul_u32_u24 v9, 20, v8
        v_sub_u32 v9, v7, v9               ; c
        v_mul_u32_u24 v8, 3072, v8
        v_lshrrev_b32 v14, 2, v9
        v_lshl_add_u32 v8, v14, 5, v8      ; + (c>>2)*32
        v_and_b32 v14, 1, v9
        v_lshl_add_u32 v8, v14, 4, v8      ; + (c&1)*16
        v_and_b32 v14, 2, v9
        v_cmp_ne_u32 vcc, 0, v14
        s_nop 1
        v_cndmask_b32 v15, v10, v12, vcc
        v_cndmask_b32 v{41+2*j}, v11, v13, vcc
        v_add_co_u32 v{40+2*j}, vcc, v15, v8
        v_addc_co_u32 v{41+2*j}, vcc, 0, v{41+2*j}, vcc
        ''')
    k.label('L_k1_addr_done')
    k('''
    s_cmp_ge_u32 s13, 8
    s_cbranch_scc0 L_k1_main_n
    s_cmp_lt_u32 s13, 12
    s_cbranch_scc1 L_k1_main_v
    ''')
    k.label('L_k1_main_n')
    k1_mainloop(k, False)
    k('''
    s_cmp_ge_u32 s13, 12
    s_cbranch_scc1 L_k1_epi_ffn
    ''')
    k(f'''
    s_mov_b32 s28, {QP}
    s_mov_b32 s29, {KP}
    s_cmp_ge_u32 s13, 4
    s_cselect_b32 s28, s29, s28
    s_and_b32 s29, s13, 3
    s_lshl_b32 s29, s29, 20                ; head0 * 131072
    s_add_u32 s28, s28, s29
    v_lshlrev_b32 v5, 6, v3                ; m*64
    v_lshl_add_u32 v6, v4, 3, v5           ; + h*8
    v_mul_u32_u24 v7, 131040, v4
    v_add_u32 v7, v7, v5
    ''')
    for t in range(5):
        for sub in range(2):
            a = acc(t, sub)
            for q in range(4):
                G0 = t * 8 + 2 * q
                off = (G0 // 5) * 131072 + (G0 % 5) * 8
                va = 7 if G0 % 5 == 4 else 6
                d = 8 + ((t * 8 + sub * 4 + q) % 4) * 2
                k(f'v_cvt_pk_bf16_f32 v{d}, v{a+4*q}, v{a+4*q+1}')
                k(f'v_cvt_pk_bf16_f32 v{d+1}, v{a+4*q+2}, v{a+4*q+3}')
                k(f's_add_u32 s29, s28, {off}')
                k.vmem(f'buffer_store_dwordx2 v[{d}:{d+1}], v{va}, s[8:11], s29 offen offset:{sub*2048}')
    k('''
    s_lshl_b32 s30, s12, 8
    v_add_u32 v5, s30, v0
    v_lshlrev_b32 v5, 6, v5
    v_mov_b32 v16, 0
    v_mov_b32 v17, 0
    v_mov_b32 v18, 0
    v_mov_b32 v19, 0
    ''')
    for j in range(8):
        k(f's_add_u32 s29, s28, {j*131072}')
        k.vmem(f'buffer_store_dwordx2 v[16:17], v5, s[8:11], s29 offen offset:40')
        k.vmem(f'buffer_store_dwordx4 v[16:19], v5, s[8:11], s29 offen offset:48')
    k('s_branch L_k1_end')
    k.label('L_k1_epi_ffn')
    k(f'''
    s_add_u32 s28, s29, {HH}
    s_add_u32 s30, s28, 98304
    v_mul_u32_u24 v5, 3072, v3
    v_lshl_add_u32 v5, v4, 3, v5           ; + h*8
    s_mov_b32 s33, {f32hex(-LOG2E)}
    ''')
    for t in range(5):
        if t == 0:
            k('''
            s_cmp_lg_u32 s31, 0
            s_cbranch_scc1 L_k1_ffn_skip0
            ''')
        for sub in range(2):
            a = acc(t, sub)
            for q in range(2):
                for pr in range(2):
                    g0, g1 = a + 4 * q + 2 * pr, a + 4 * q + 2 * pr + 1
                    u0, u1 = g0 + 8, g1 + 8
                    k(f'''
                    v_cvt_pk_bf16_f32 v8, v{g0}, v{g1}
                    v_cvt_pk_bf16_f32 v9, v{u0}, v{u1}
                    v_lshlrev_b32 v10, 16, v8
                    v_and_b32 v11, 0xffff0000, v8
                    v_mul_f32 v12, s33, v10
                    v_mul_f32 v13, s33, v11
                    v_exp_f32 v12, v12
                    v_exp_f32 v13, v13
                    v_lshlrev_b32 v14, 16, v9
                    v_and_b32 v15, 0xffff0000, v9
                    v_add_f32 v12, 1.0, v12
                    v_add_f32 v13, 1.0, v13
                    v_rcp_f32 v12, v12
                    v_rcp_f32 v13, v13
                    s_nop 0
                    v_mul_f32 v10, v10, v12
                    v_mul_f32 v11, v11, v13
                    v_cvt_pk_bf16_f32 v8, v10, v11
                    v_lshlrev_b32 v10, 16, v8
                    v_and_b32 v11, 0xffff0000, v8
                    v_mul_f32 v10, v10, v14
                    v_mul_f32 v11, v11, v15
                    v_cvt_pk_bf16_f32 v{16 + 2*((sub*2+q)%2) + pr}, v10, v11
                    ''')
                d = 16 + 2 * ((sub * 2 + q) % 2)
                so = 's30' if sub else 's28'
                k.vmem(f'buffer_store_dwordx2 v[{d}:{d+1}], v5, s[8:11], {so} offen offset:{t*32 + q*16}')
        if t == 0:
            k.label('L_k1_ffn_skip0')
    k('s_branch L_k1_end')
    k.label('L_k1_main_v')
    k.vm = []; k.lg = []
    k1_mainloop(k, True)
    k(f'''
    s_sub_u32 s28, s13, 8
    s_mul_i32 s28, s28, 655360             ; 160*4096
    s_add_u32 s28, s28, {VT}
    v_and_b32 v5, 31, v2
    v_lshlrev_b32 v5, 12, v5
    v_lshl_add_u32 v5, v4, 4, v5           ; + h*16
    s_lshl_b32 s29, s22, 1
    v_add_u32 v5, s29, v5                  ; + row0*2
    ''')
    for t in range(5):
        for sub in range(2):
            a = acc(t, sub)
            for q in range(4):
                d = 8 + ((t * 8 + sub * 4 + q) % 4) * 2
                k(f'v_cvt_pk_bf16_f32 v{d}, v{a+4*q}, v{a+4*q+1}')
                k(f'v_cvt_pk_bf16_f32 v{d+1}, v{a+4*q+2}, v{a+4*q+3}')
                k(f's_add_u32 s29, s28, {t*32*4096}')
                imm = sub * 64 + (16 * (q & 1) + 4 * (q >> 1)) * 2
                k.vmem(f'buffer_store_dwordx2 v[{d}:{d+1}], v5, s[8:11], s29 offen offset:{imm}')
    k.label('L_k1_end')
    k('s_waitcnt vmcnt(0)')
    k.label('L_k1_done')
    k('s_endpgm')
    return k.text(), kernel_desc('gemm1_kernel', 256 + 96, 40, 256)

K2_VOFF = 24576
K2_VSTR = 784
K2_LDS = K2_VOFF + 32 * K2_VSTR
def gen_k2():
    k = K()
    k.raw(kernel_header('attn_kernel'))
    S0 = 64
    def S(a, kt):
        return S0 + (a * 18 + kt) * 4
    KF0 = 32
    QF = 48
    VF0 = 208
    OA = 240
    k(f'''
    s_cmp_ge_u32 s2, 512
    s_cbranch_scc1 L_k2_done
    s_load_dwordx2 s[6:7], s[0:1], 72
    s_lshr_b32 s12, s2, 4                  ; head
    s_and_b32 s13, s2, 15
    s_lshl_b32 s13, s13, 7                 ; q0
    v_lshrrev_b32 v1, 6, v0
    v_and_b32 v2, 63, v0
    s_nop 0
    v_readfirstlane_b32 s14, v1            ; wave
    v_lshlrev_b32 v3, 4, v2                ; lane*16
    v_add_u32 v4, 4096, v3
    s_lshl_b32 s15, s12, 11
    s_add_u32 s15, s15, s13                ; head*2048 + q0
    s_sub_u32 s16, s15, 256
    s_lshl_b32 s16, s16, 6
    s_mul_i32 s17, s14, 6144
    s_add_u32 s16, s16, s17
    s_add_u32 s16, s16, {KP}
    s_waitcnt lgkmcnt(0)
    s_add_u32 s18, s6, s16
    s_addc_u32 s19, s7, 0
    s_mov_b32 m0, s17
    s_nop 0
    ''')
    for j in range(4):
        k.vmem(f'global_load_lds_dwordx4 v3, s[18:19] offset:{j*1024}', 'dma')
    k('s_add_u32 m0, s17, 4096')
    k('s_nop 0')
    for j in range(2):
        k.vmem(f'global_load_lds_dwordx4 v4, s[18:19] offset:{j*1024}', 'dma')
    k(f'''
    s_mul_i32 s20, s12, 20
    s_mul_i32 s21, s14, 5
    s_add_u32 s20, s20, s21                ; head*20 + 5w
    s_lshl_b32 s20, s20, 12                ; *4096
    s_lshl_b32 s22, s13, 1
    s_add_u32 s20, s20, s22
    s_add_u32 s20, s20, {VT - 512}
    s_add_u32 s18, s6, s20
    s_addc_u32 s19, s7, 0
    s_mul_i32 s21, s21, {K2_VSTR}
    s_add_u32 s21, s21, {K2_VOFF}
    s_mov_b32 exec_hi, 0xffff
    ''')
    for j in range(5):
        k(f's_add_u32 m0, s21, {j*K2_VSTR}')
        k('s_nop 0')
        k.vmem(f'global_load_lds_dwordx4 v3, s[18:19]', 'dma')
        k('s_add_u32 s18, s18, 4096')
        k('s_addc_u32 s19, s19, 0')
    k('s_mov_b64 exec, -1')
    k(f'''
    s_lshl_b32 s22, s14, 5
    s_add_u32 s23, s15, s22                ; head*2048 + q0 + 32w
    s_lshl_b32 s23, s23, 6
    s_add_u32 s23, s23, {QP}
    s_add_u32 s18, s6, s23
    s_addc_u32 s19, s7, 0
    v_and_b32 v5, 15, v2                   ; l&15
    v_lshrrev_b32 v6, 4, v2                ; g
    v_lshlrev_b32 v7, 6, v5
    v_lshl_add_u32 v7, v6, 4, v7           ; (l&15)*64 + g*16
    ''')
    k.vmem(f'global_load_dwordx4 v[{QF}:{QF+3}], v7, s[18:19]', 'q')
    k.vmem(f'global_load_dwordx4 v[{QF+4}:{QF+7}], v7, s[18:19] offset:1024', 'q')
    k(f'''
    s_lshl_b32 s24, s22, 6                 ; 32w*64
    v_add_u32 v8, s24, v7
    v_mul_u32_u24 v9, {K2_VSTR}, v5
    v_lshl_add_u32 v9, v6, 4, v9
    s_lshl_b32 s24, s22, 1
    s_add_u32 s24, s24, {K2_VOFF}
    v_add_u32 v9, s24, v9
    s_add_u32 s25, s13, s22
    s_sub_u32 s25, s25, 256
    v_lshlrev_b32 v10, 2, v6
    v_sub_u32 v10, v5, v10                 ; (l&15) - 4g
    v_cmp_le_i32 s[32:33], 0, v10
    v_cmp_le_i32 s[34:35], 1, v10
    v_cmp_le_i32 s[36:37], 2, v10
    v_cmp_le_i32 s[38:39], 3, v10
    v_mov_b32 v11, 0xff800000              ; -inf
    s_mov_b32 s40, {f32hex(LOG2E * 20 ** -0.5)}
    ''')
    k.wait_vm_all()
    k('s_barrier')
    PD = 3
    def kread(kt):
        d = KF0 + (kt % 4) * 4
        k.lds(f'ds_read_b128 v[{d}:{d+3}], v8 offset:{kt*1024}', ('k', kt))
    for kt in range(PD):
        kread(kt)
    for kt in range(18):
        if kt + PD < 18:
            kread(kt + PD)
        k.wait_lg(('k', kt))
        d = KF0 + (kt % 4) * 4
        for a in range(2):
            if (a == 0 and kt == 17) or (a == 1 and kt == 0):
                continue
            s = S(a, kt)
            k(f'v_mfma_f32_16x16x32_bf16 v[{s}:{s+3}], v[{d}:{d+3}], v[{QF+4*a}:{QF+4*a+3}], 0')
    def vread(p):
        d = VF0 + (p % 4) * 8
        k.lds(f'ds_read_b128 v[{d}:{d+3}], v9 offset:{p*64}', ('v', p))
        k.lds(f'ds_read_b128 v[{d+4}:{d+7}], v9 offset:{p*64 + 16*K2_VSTR}', ('v', p))
    for p in range(3):
        vread(p)
    k('s_nop 7')
    k('s_nop 1')
    for p in range(8):
        lb = k.newlabel('L_k2_v')
        k(f's_cmp_ge_i32 s25, {-32*p}')
        k(f's_cbranch_scc1 {lb}')
        for a in range(2):
            for kt in (2 * p, 2 * p + 1):
                if (a == 0 and kt == 17) or (a == 1 and kt == 0):
                    continue
                for r in range(4):
                    k(f'v_mov_b32 v{S(a,kt)+r}, v11')
        k.label(lb)
    for a in range(2):
        for r in range(4):
            s = S(a, a) + r
            k(f'v_cndmask_b32 v{s}, v{s}, v11, s[{32+2*r}:{33+2*r}]')
            s = S(a, a + 16) + r
            k(f'v_cndmask_b32 v{s}, v11, v{s}, s[{32+2*r}:{33+2*r}]')
    for a in range(2):
        regs = [S(a, kt) + r for kt in range(a, a + 17) for r in range(4)]
        m = 12 + a
        k(f'v_max3_f32 v{m}, v{regs[0]}, v{regs[1]}, v{regs[2]}')
        i = 3
        while i < len(regs):
            if i + 1 < len(regs):
                k(f'v_max3_f32 v{m}, v{m}, v{regs[i]}, v{regs[i+1]}')
                i += 2
            else:
                k(f'v_max_f32 v{m}, v{m}, v{regs[i]}')
                i += 1
    def xlane(op, r):
        k(f'''
        v_mov_b32 v16, v{r}
        s_nop 1
        v_permlane32_swap_b32 v16, v{r}
        s_nop 1
        {op} v{r}, v{r}, v16
        v_mov_b32 v16, v{r}
        s_nop 1
        v_permlane16_swap_b32 v16, v{r}
        s_nop 1
        {op} v{r}, v{r}, v16
        ''')
    for a in range(2):
        xlane('v_max_f32', 12 + a)
        k(f'v_mul_f32 v{12+a}, s40, v{12+a}')
    for a in range(2):
        k(f'v_mov_b32 v{14+a}, 0')
        for kt in range(a, a + 17):
            s = S(a, kt)
            for r in range(4):
                k(f'v_fma_f32 v{s+r}, v{s+r}, s40, -v{12+a}')
            for r in range(4):
                k(f'v_exp_f32 v{s+r}, v{s+r}')
            k('s_nop 0')
            k(f'v_add_f32 v17, v{s}, v{s+1}')
            k(f'v_add_f32 v18, v{s+2}, v{s+3}')
            k(f'v_add_f32 v17, v17, v18')
            k(f'v_add_f32 v{14+a}, v{14+a}, v17')
    for a in range(2):
        for p in range(9):
            s0, s1 = S(a, 2 * p), S(a, 2 * p + 1)
            if a == 1 and p == 0:
                k(f'v_mov_b32 v{s0}, 0')
                k(f'v_mov_b32 v{s0+1}, 0')
            else:
                k(f'v_cvt_pk_bf16_f32 v{s0}, v{s0}, v{s0+1}')
                k(f'v_cvt_pk_bf16_f32 v{s0+1}, v{s0+2}, v{s0+3}')
            if a == 0 and p == 8:
                k(f'v_mov_b32 v{s0+2}, 0')
                k(f'v_mov_b32 v{s0+3}, 0')
            else:
                k(f'v_cvt_pk_bf16_f32 v{s0+2}, v{s1}, v{s1+1}')
                k(f'v_cvt_pk_bf16_f32 v{s0+3}, v{s1+2}, v{s1+3}')
    for a in range(2):
        xlane('v_add_f32', 14 + a)
        k(f'v_rcp_f32 v{14+a}, v{14+a}')
    for p in range(9):
        if p + 3 < 9:
            vread(p + 3)
        k.wait_lg(('v', p))
        d = VF0 + (p % 4) * 8
        for a in range(2):
            for dt in range(2):
                o = OA + (a * 2 + dt) * 4
                cin = '0' if p == 0 else f'v[{o}:{o+3}]'
                s0 = S(a, 2 * p)
                k(f'v_mfma_f32_16x16x32_bf16 v[{o}:{o+3}], v[{d+4*dt}:{d+4*dt+3}], v[{s0}:{s0+3}], {cin}')
    k('s_nop 7')
    k('s_nop 1')
    k(f'''
    s_add_u32 s26, s13, s22
    s_mul_i32 s26, s26, 1280
    s_mul_i32 s27, s12, 40
    s_add_u32 s26, s26, s27
    s_add_u32 s26, s26, {OO}
    s_add_u32 s18, s6, s26
    s_addc_u32 s19, s7, 0
    v_mul_u32_u24 v20, 1280, v5
    v_lshl_add_u32 v20, v6, 3, v20
    v_add_u32 v21, 20480, v20
    ''')
    for a in range(2):
        for dt in range(2):
            o = OA + (a * 2 + dt) * 4
            for r in range(4):
                k(f'v_mul_f32 v{o+r}, v{o+r}, v{14+a}')
            k(f'v_cvt_pk_bf16_f32 v{o}, v{o}, v{o+1}')
            k(f'v_cvt_pk_bf16_f32 v{o+1}, v{o+2}, v{o+3}')
    for a in range(2):
        o = OA + (a * 2) * 4
        k.vmem(f'global_store_dwordx2 v{20+a}, v[{o}:{o+1}], s[18:19]')
    k('s_mov_b64 exec, 0xffff')
    for a in range(2):
        o = OA + (a * 2 + 1) * 4
        k.vmem(f'global_store_dwordx2 v{20+a}, v[{o}:{o+1}], s[18:19] offset:32')
    k('s_mov_b64 exec, -1')
    k('s_waitcnt vmcnt(0)')
    k.label('L_k2_done')
    k('s_endpgm')
    return k.text(), kernel_desc('attn_kernel', 256, 48, 256)

K3_SLOT = 10240
K3_LDS = 4 * 3 * K3_SLOT
def k3_body(k, nblk, rowstride_log):
    AC0 = 0 + 16
    XA0 = 96
    WF = 192
    OFFS = 216
    AV = 226
    TR = 230
    R = 6; PD = 4
    nfr = nblk * 10
    def frag_read(n):
        b, r = divmod(n, 10)
        s, t = divmod(r, 5)
        off = (b % 3) * K3_SLOT + (16 * s) * 160 + t * 32
        d = WF + (n % R) * 4
        k.lds(f'ds_read_b64_tr_b16 v[{d}:{d+1}], v{TR} offset:{off}', ('fr', n))
        k.lds(f'ds_read_b64_tr_b16 v[{d+2}:{d+3}], v{TR} offset:{off + 8*160}', ('fr', n))
    def issue_A(b):
        st = XA0 + (b % 3) * 32
        for mt in range(4):
            for s in range(2):
                d = st + (mt * 2 + s) * 4
                k.vmem(f'global_load_dwordx4 v[{d}:{d+3}], v{AV+mt}, s[16:17] offset:{b*128 + s*16}', ('A', b))
    def issue_DMA(b):
        for j in range(10):
            k(f's_add_u32 m0, s21, {(b % 3)*K3_SLOT + j*1024}')
            k('s_nop 0')
            k.vmem(f'global_load_lds_dwordx4 v{OFFS+j}, s[18:19]', ('D', b))
        k('s_add_u32 s18, s18, 81920')
        k('s_addc_u32 s19, s19, 0')
    issue_DMA(0); issue_A(0); issue_DMA(1); issue_A(1)
    k.wait_vm(('D', 0))
    for n in range(PD):
        frag_read(n)
    for b in range(nblk):
        k.wait_vm(('A', b))
        if b + 1 < nblk:
            k.wait_vm(('D', b + 1))
        if b + 2 < nblk:
            issue_DMA(b + 2); issue_A(b + 2)
        for s in range(2):
            for t in range(5):
                n = b * 10 + s * 5 + t
                if n + PD < nfr:
                    frag_read(n + PD)
                k.wait_lg(('fr', n))
                wf = WF + (n % R) * 4
                for mt in range(4):
                    xa = XA0 + (b % 3) * 32 + (mt * 2 + s) * 4
                    a = AC0 + (mt * 5 + t) * 4
                    cin = '0' if (b == 0 and s == 0) else f'v[{a}:{a+3}]'
                    k(f'v_mfma_f32_16x16x32_bf16 v[{a}:{a+3}], v[{wf}:{wf+3}], v[{xa}:{xa+3}], {cin}')
    k('s_nop 7')
    k('s_nop 1')

def gen_k3():
    k = K()
    k.raw(kernel_header('gemm2_kernel'))
    AC0 = 16; OFFS = 216; AV = 226; TR = 230
    k(f'''
    s_cmp_ge_u32 s2, 256
    s_cbranch_scc1 L_k3_done
    s_load_dwordx2 s[4:5], s[0:1], 0       ; x
    s_load_dwordx2 s[8:9], s[0:1], 16      ; wo
    s_load_dwordx2 s[10:11], s[0:1], 48    ; w_down
    s_load_dwordx2 s[24:25], s[0:1], 56    ; out
    s_load_dwordx2 s[6:7], s[0:1], 72      ; ws
    s_and_b32 s12, s2, 7
    s_lshl_b32 s12, s12, 2
    s_lshr_b32 s3, s2, 3
    s_and_b32 s3, s3, 3
    s_add_u32 s12, s12, s3                 ; m tile (0..31)
    s_lshr_b32 s13, s2, 5                  ; n tile (0..7)
    s_lshl_b32 s12, s12, 6                 ; row0
    s_mul_i32 s13, s13, 160                ; n0*2 bytes
    v_lshrrev_b32 v1, 6, v0
    v_and_b32 v2, 63, v0
    s_nop 0
    v_readfirstlane_b32 s14, v1            ; wave
    s_mul_i32 s21, s14, {3*K3_SLOT}
    v_and_b32 v3, 15, v2                   ; l&15
    v_lshrrev_b32 v4, 4, v2                ; g
    v_lshrrev_b32 v5, 2, v3
    v_and_b32 v6, 1, v4
    v_lshl_add_u32 v5, v6, 2, v5
    v_lshrrev_b32 v6, 1, v4
    v_lshl_add_u32 v5, v6, 5, v5
    v_mul_u32_u24 v5, 160, v5
    v_and_b32 v6, 3, v3
    v_lshl_add_u32 v5, v6, 3, v5
    v_add_u32 v{TR}, s21, v5
    ''')
    for j in range(10):
        k(f'''
        v_add_u32 v5, {64*j}, v2
        v_mul_u32_u24 v6, 6554, v5
        v_lshrrev_b32 v6, 16, v6           ; rho
        v_mul_u32_u24 v7, 10, v6
        v_sub_u32 v7, v5, v7               ; c
        v_and_b32 v8, 3, v6                ; i
        v_bfe_u32 v9, v6, 2, 1             ; g_lo
        v_lshl_add_u32 v8, v9, 4, v8
        v_bfe_u32 v9, v6, 3, 1             ; u
        v_lshl_add_u32 v8, v9, 2, v8
        v_bfe_u32 v9, v6, 4, 1             ; s
        v_lshl_add_u32 v8, v9, 3, v8
        v_bfe_u32 v9, v6, 5, 1             ; g_hi
        v_lshl_add_u32 v8, v9, 5, v8       ; k
        v_mul_u32_u24 v8, 1280, v8
        v_lshl_add_u32 v{OFFS+j}, v7, 4, v8
        ''')
    k('''
    v_add_u32 v5, s12, v3                  ; row0 + (l&15)
    s_waitcnt lgkmcnt(0)
    s_cmp_lg_u32 s14, 0
    s_cbranch_scc1 L_k3_ffn
    ''')
    k(f'''
    s_add_u32 s16, s6, {OO}
    s_addc_u32 s17, s7, 0
    s_add_u32 s18, s8, s13
    s_addc_u32 s19, s9, 0
    v_mul_u32_u24 v6, 1280, v5
    v_lshl_add_u32 v{AV}, v4, 5, v6
    v_add_u32 v{AV+1}, 20480, v{AV}
    v_add_u32 v{AV+2}, 40960, v{AV}
    v_add_u32 v{AV+3}, 61440, v{AV}
    ''')
    k3_body(k, 10, 0)
    k('s_branch L_k3_red')
    k.label('L_k3_ffn')
    k.vm = []; k.lg = []
    k(f'''
    s_sub_u32 s15, s14, 1                  ; third
    s_lshl_b32 s22, s15, 10
    s_add_u32 s22, s22, {HH}
    s_add_u32 s16, s6, s22
    s_addc_u32 s17, s7, 0
    s_mul_i32 s22, s15, 655360             ; 512*1280
    s_add_u32 s22, s22, s13
    s_add_u32 s18, s10, s22
    s_addc_u32 s19, s11, 0
    v_mul_u32_u24 v6, 3072, v5
    v_lshl_add_u32 v{AV}, v4, 5, v6
    v_add_u32 v{AV+1}, 49152, v{AV}
    v_add_u32 v{AV+2}, 98304, v{AV}
    v_add_u32 v{AV+3}, 147456, v{AV}
    ''')
    k3_body(k, 8, 0)
    k.label('L_k3_red')
    k.vm = []; k.lg = []
    k(f'''
    s_lshl_b32 s22, s14, 4
    v_add_u32 v5, s22, v5
    v_mul_u32_u24 v5, 1280, v5
    v_lshl_add_u32 v5, v4, 3, v5
    v_add_u32 v5, s13, v5                  ; + n0*2 + g*8
    ''')
    for t in range(5):
        k.vmem(f'global_load_dwordx2 v[{96+2*t}:{97+2*t}], v5, s[4:5] offset:{t*32}', 'x')
    k('s_barrier')
    k('''
    s_mul_i32 s22, s14, 20480
    v_lshlrev_b32 v6, 4, v2
    v_add_u32 v7, s22, v6
    ''')
    for tl in range(20):
        a = AC0 + tl * 4
        k.lds(f'ds_write_b128 v7, v[{a}:{a+3}] offset:{tl*1024}')
    k.wait_lg_all()
    k('s_barrier')
    k('''
    s_mul_i32 s22, s14, 5120
    v_add_u32 v7, s22, v6
    v_add_u32 v6, 40960, v7
    ''')
    for t in range(5):
        for w in range(4):
            d = 112 + (t * 4 + w) * 4
            k.lds(f'ds_read_b128 v[{d}:{d+3}], v{7 if w < 2 else 6} offset:{(w&1)*20480 + t*1024}', ('r', t))
    k.wait_vm_all()
    for t in range(5):
        k.wait_lg(('r', t))
        p0 = 112 + t * 16
        for r in range(4):
            k(f'v_add_f32 v{p0+4+r}, v{p0+4+r}, v{p0+8+r}')
            k(f'v_add_f32 v{p0+4+r}, v{p0+4+r}, v{p0+12+r}')
        for h in range(2):
            a0, a1 = p0 + 2 * h, p0 + 2 * h + 1
            f0, f1 = a0 + 4, a1 + 4
            xr = 96 + 2 * t + h
            k(f'''
            v_cvt_pk_bf16_f32 v8, v{a0}, v{a1}
            v_cvt_pk_bf16_f32 v9, v{f0}, v{f1}
            v_lshlrev_b32 v10, 16, v8
            v_and_b32 v11, 0xffff0000, v8
            v_lshlrev_b32 v12, 16, v{xr}
            v_and_b32 v13, 0xffff0000, v{xr}
            v_add_f32 v10, v10, v12
            v_add_f32 v11, v11, v13
            v_cvt_pk_bf16_f32 v8, v10, v11
            v_lshlrev_b32 v10, 16, v8
            v_and_b32 v11, 0xffff0000, v8
            v_lshlrev_b32 v12, 16, v9
            v_and_b32 v13, 0xffff0000, v9
            v_add_f32 v10, v10, v12
            v_add_f32 v11, v11, v13
            v_cvt_pk_bf16_f32 v{xr}, v10, v11
            ''')
        k.vmem(f'global_store_dwordx2 v5, v[{96+2*t}:{97+2*t}], s[24:25] offset:{t*32}')
    k('s_waitcnt vmcnt(0)')
    k.label('L_k3_done')
    k('s_endpgm')
    return k.text(), kernel_desc('gemm2_kernel', 232, 32, 232)

HEADER = open('parallel_sum__sliding_block__swiglu_ffn__prompt.s.ref').read().split('; Override launch')[0]

def main(path):
    parts = [gen_ln(), gen_k1(), gen_k2(), gen_k3()]
    s = HEADER
    s += '; @launch kernel=ln_kernel grid=(128,1,1) block=(256,1,1) lds=0\n'
    s += f'; @launch kernel=gemm1_kernel grid=(256,1,1) block=(256,1,1) lds={K1_RING*K1_BUF}\n'
    s += f'; @launch kernel=attn_kernel grid=(512,1,1) block=(256,1,1) lds={K2_LDS}\n'
    s += f'; @launch kernel=gemm2_kernel grid=(256,1,1) block=(256,1,1) lds={K3_LDS}\n'
    s += '.amdgcn_target "amdgcn-amd-amdhsa--gfx950"\n.text\n'
    for t, d in parts:
        s += t
    s += '.section .rodata,"a"\n'
    for t, d in parts:
        s += '.p2align 6\n' + d
    open(path, 'w').write(s)

if __name__ == '__main__':
    main(sys.argv[1] if len(sys.argv) > 1 else 'parallel_sum__sliding_block__swiglu_ffn__prompt.s')
```

```python
class K:
    def __init__(self):
        self.out = []
        self.vm = []
        self.lg = []
        self.lbl = 0
    def __call__(self, s):
        for line in s.strip('\n').split('\n'):
            self.out.append('    ' + line.strip())
    def raw(self, s):
        self.out.append(s)
    def label(self, name):
        self.out.append(name + ':')
    def newlabel(self, base='L'):
        self.lbl += 1
        return f'{base}_{id(self) & 0xffff:x}_{self.lbl}'
    def vmem(self, s, tag=None):
        import os
        if 'noS' in os.environ.get('EXP', '') and 'store' in s:
            return
        self(s)
        self.vm.append(tag)
    def wait_vm(self, tag):
        idx = [i for i, t in enumerate(self.vm) if t == tag]
        if not idx:
            return
        last = idx[-1]
        n = len(self.vm) - 1 - last
        assert n <= 63, n
        self(f's_waitcnt vmcnt({n})')
        self.vm = self.vm[last + 1:]
    def wait_vm_all(self):
        self('s_waitcnt vmcnt(0)')
        self.vm = []
    def lds(self, s, tag=None):
        self(s)
        self.lg.append(tag)
    def wait_lg(self, tag):
        idx = [i for i, t in enumerate(self.lg) if t == tag]
        if not idx:
            return
        last = idx[-1]
        n = len(self.lg) - 1 - last
        if n > 15:
            n = 15
        self(f's_waitcnt lgkmcnt({n})')
        self.lg = self.lg[len(self.lg) - n:] if n else []
    def wait_lg_all(self):
        self('s_waitcnt lgkmcnt(0)')
        self.lg = []
    def stamp(self, idx):
        import os
        if 'ts' not in os.environ.get('EXP', ''):
            return
        self(f's_memtime s[{70+2*idx}:{71+2*idx}]')
    def stamp_flush(self, n, wsreg, wgreg='s2', base=0x3000000):
        import os
        if 'ts' not in os.environ.get('EXP', ''):
            return
        self('s_waitcnt lgkmcnt(0)')
        self(f's_lshl_b32 s90, {wgreg}, 6')
        self(f's_add_u32 s90, s90, {base}')
        self(f's_add_u32 s92, s{wsreg}, s90')
        self(f's_addc_u32 s93, s{wsreg+1}, 0')
        self('v_mov_b32 v1, 0')
        self('v_cmp_eq_u32 vcc, 0, v0')
        self('s_and_saveexec_b64 s[94:95], vcc')
        for i in range(n):
            self(f'v_mov_b32 v2, s{70+2*i}')
            self(f'global_store_dword v1, v2, s[92:93] offset:{4*i}')
        self('s_waitcnt vmcnt(0)')
        self('s_mov_b64 exec, s[94:95]')
    def text(self):
        return '\n'.join(self.out) + '\n'

def vr(b, n=1):
    return f'v{b}' if n == 1 else f'v[{b}:{b+n-1}]'
def ar(b, n=1):
    return f'a{b}' if n == 1 else f'a[{b}:{b+n-1}]'
def sr(b, n=1):
    return f's{b}' if n == 1 else f's[{b}:{b+n-1}]'

def kernel_header(name):
    return f'''.globl {name}
.p2align 8
.type {name},@function
{name}:
'''

def kernel_desc(name, vgpr, sgpr, accum):
    return f'''.amdhsa_kernel {name}
  .amdhsa_next_free_vgpr {vgpr}
  .amdhsa_next_free_sgpr {sgpr}
  .amdhsa_accum_offset {accum}
  .amdhsa_group_segment_fixed_size 0
  .amdhsa_kernarg_size 80
  .amdhsa_user_sgpr_count 2
  .amdhsa_user_sgpr_kernarg_segment_ptr 1
  .amdhsa_system_sgpr_workgroup_id_x 1
.end_amdhsa_kernel
'''
```

```python
import sys, os
from asmlib import *
EXP = os.environ.get('EXP', '')

XN = 0x0000000
QF = 0x0400000
KF = 0x0800000
VF = 0x0B00000
HF = 0x1000000
OF = 0x1800000
WS_BYTES = 268435456
LOG2E = 1.4426950408889634

def f32hex(x):
    import struct
    return '0x%08x' % struct.unpack('<I', struct.pack('<f', x))[0]

def ws_srd(k, sbase, sptr):
    k(f'''
    s_mov_b32 s{sbase}, s{sptr}
    s_and_b32 s{sbase+1}, s{sptr+1}, 0xffff
    s_mov_b32 s{sbase+2}, {WS_BYTES}
    s_mov_b32 s{sbase+3}, 0x00020000
    ''')

def gen_ln():
    k = K()
    k.raw(kernel_header('ln_kernel'))
    k('''
    s_cmp_ge_u32 s2, 128
    s_cbranch_scc1 L_ln_done
    s_load_dwordx2 s[4:5], s[0:1], 0
    s_load_dwordx2 s[6:7], s[0:1], 72
    v_lshrrev_b32 v1, 4, v0
    s_lshl_b32 s3, s2, 4
    v_add_u32 v1, s3, v1                  ; row
    v_and_b32 v2, 15, v0                  ; i
    v_lshrrev_b32 v3, 5, v1
    v_mul_u32_u24 v3, 40960, v3
    v_and_b32 v73, 31, v1
    v_lshl_add_u32 v3, v73, 4, v3
    v_lshl_add_u32 v3, v2, 9, v3
    v_mul_u32_u24 v1, 1280, v1
    v_lshl_add_u32 v1, v2, 4, v1
    s_waitcnt lgkmcnt(0)
    ''')
    for c in range(5):
        k(f'global_load_dwordx4 v[{4+4*c}:{7+4*c}], v1, s[4:5] offset:{256*c}')
    k('s_waitcnt vmcnt(0)')
    for j in range(20):
        k(f'v_lshlrev_b32 v{32+2*j}, 16, v{4+j}')
        k(f'v_and_b32 v{33+2*j}, 0xffff0000, v{4+j}')
    for a in range(4):
        k(f'v_add_f32 v{24+a}, v{32+a}, v{36+a}')
    for j in range(8, 40, 4):
        for a in range(4):
            k(f'v_add_f32 v{24+a}, v{24+a}, v{32+j+a}')
    k('''
    v_add_f32 v24, v24, v25
    v_add_f32 v26, v26, v27
    v_add_f32 v24, v24, v26
    ''')
    def dpp_reduce(r):
        for sh in (8, 4, 2, 1):
            k('s_nop 1')
            k(f'v_add_f32_dpp v{r}, v{r}, v{r} row_ror:{sh} row_mask:0xf bank_mask:0xf')
    dpp_reduce(24)
    k(f'v_mul_f32 v24, {f32hex(1.0/640)}, v24')
    for a in range(4):
        k(f'v_sub_f32 v72, v{32+a}, v24')
        k(f'v_mul_f32 v{26+a}, v72, v72')
    for j in range(4, 40):
        k(f'v_sub_f32 v72, v{32+j}, v24')
        k(f'v_fmac_f32 v{26+(j&3)}, v72, v72')
    k('''
    v_add_f32 v26, v26, v27
    v_add_f32 v28, v28, v29
    v_add_f32 v26, v26, v28
    ''')
    dpp_reduce(26)
    k(f'v_mul_f32 v26, {f32hex(1.0/640)}, v26')
    k(f'''
    v_cvt_pk_bf16_f32 v27, v24, v26
    v_lshlrev_b32 v24, 16, v27            ; m_b
    v_and_b32 v26, 0xffff0000, v27        ; var_b
    v_add_f32 v26, {f32hex(1e-5)}, v26
    v_cvt_pk_bf16_f32 v27, v26, v26
    v_lshlrev_b32 v26, 16, v27
    v_sqrt_f32 v26, v26
    s_nop 0
    v_cvt_pk_bf16_f32 v27, v26, v26
    v_lshlrev_b32 v26, 16, v27
    v_rcp_f32 v26, v26
    ''')
    for j in range(20):
        a, b = 32 + 2 * j, 33 + 2 * j
        k(f'''
        v_sub_f32 v{a}, v{a}, v24
        v_sub_f32 v{b}, v{b}, v24
        v_cvt_pk_bf16_f32 v72, v{a}, v{b}
        v_lshlrev_b32 v{a}, 16, v72
        v_and_b32 v{b}, 0xffff0000, v72
        v_mul_f32 v{a}, v{a}, v26
        v_mul_f32 v{b}, v{b}, v26
        v_cvt_pk_bf16_f32 v{4+j}, v{a}, v{b}
        ''')
    for c in range(5):
        k(f'global_store_dwordx4 v3, v[{4+4*c}:{7+4*c}], s[6:7]')
        if c < 4:
            k('v_add_u32 v3, 8192, v3')
    k('s_waitcnt vmcnt(0)')
    k.label('L_ln_done')
    k('s_endpgm')
    return k.text(), kernel_desc('ln_kernel', 80, 16, 80)

K1_NCH = 10
K1_RING = 4
K1_BUF = 20480
ACC0 = 96
WF0 = 64
WFR = 6
def acc(t, sub):
    return ACC0 + (t * 2 + sub) * 16

def k1_mainloop(k, vmode):
    PD = 4
    nfr = K1_NCH * 20
    def frag_read(n):
        c, r = divmod(n, 20)
        s, t = divmod(r, 5)
        buf = c % K1_RING
        base = 52 if buf < 2 else 53
        off = (buf & 1) * K1_BUF + (16 * s) * 320 + t * 32
        d = WF0 + (n % WFR) * 4
        k.lds(f'ds_read_b64_tr_b16 v[{d}:{d+1}], v{base} offset:{off}', ('fr', n))
        k.lds(f'ds_read_b64_tr_b16 v[{d+2}:{d+3}], v{base} offset:{off + 4*320}', ('fr', n))
    def A_ops(c):
        ops = []
        st = (c % 3) * 32
        for sub in range(2):
            for s in range(4):
                d = st + (sub * 4 + s) * 4
                def f(d=d, sub=sub, s=s, last=(sub == 1 and s == 3)):
                    k.vmem(f'global_load_dwordx4 a[{d}:{d+3}], v{50+sub}, s[4:5] offset:{s*1024}', ('A', c))
                    if last:
                        k('s_add_u32 s4, s4, 4096')
                        k('s_addc_u32 s5, s5, 0')
                ops.append(f)
        return ops
    def D_ops(c):
        ops = []
        buf = c % K1_RING
        for j in range(5):
            def f(j=j):
                k(f's_add_u32 m0, s21, {buf*K1_BUF + j*1024}')
                k('s_nop 0')
                k.vmem(f'global_load_lds_dwordx4 v[{40+2*j}:{41+2*j}], off', ('D', c))
                k(f'v_add_co_u32 v{40+2*j}, vcc, s20, v{40+2*j}')
                k(f'v_addc_co_u32 v{41+2*j}, vcc, 0, v{41+2*j}, vcc')
            ops.append(f)
        return ops
    for f in D_ops(0) + A_ops(0) + D_ops(1) + A_ops(1) + D_ops(2):
        f()
    k.wait_vm(('D', 0))
    k('s_barrier')
    k.stamp(1)
    for n in range(PD):
        frag_read(n)
    for c in range(K1_NCH):
        k.wait_vm(('A', c))
        if c == 1: k.stamp(2)
        if c == 5: k.stamp(3)
        pend = A_ops(c + 2) if c + 2 < K1_NCH else []
        for s in range(4):
            for t in range(5):
                n = c * 20 + s * 5 + t
                if n + PD < nfr:
                    frag_read(n + PD)
                k.wait_lg(('fr', n))
                wf = WF0 + (n % WFR) * 4
                for sub in range(2):
                    xa = (c % 3) * 32 + (sub * 4 + s) * 4
                    a = acc(t, sub)
                    cin = '0' if (c == 0 and s == 0) else f'v[{a}:{a+15}]'
                    if not vmode:
                        k(f'v_mfma_f32_32x32x16_bf16 v[{a}:{a+15}], v[{wf}:{wf+3}], a[{xa}:{xa+3}], {cin}')
                    else:
                        k(f'v_mfma_f32_32x32x16_bf16 v[{a}:{a+15}], a[{xa}:{xa+3}], v[{wf}:{wf+3}], {cin}')
                if pend:
                    pend.pop(0)()
            if s == 1 and c + 1 < K1_NCH:
                while pend:
                    pend.pop(0)()
                k.wait_vm(('D', c + 1))
                k('s_barrier')
                if c + 3 < K1_NCH:
                    pend = D_ops(c + 3)
        while pend:
            pend.pop(0)()
    k('s_nop 15')
    k('s_nop 3')
    k.stamp(4)

def gen_k1():
    k = K()
    k.raw(kernel_header('gemm1_kernel'))
    k('''
    s_cmp_ge_u32 s2, 256
    s_cbranch_scc1 L_k1_done
    ''')
    k.stamp(0)
    if 'ts' in EXP: k('s_memrealtime s[84:85]')
    k('''
    s_load_dwordx2 s[6:7], s[0:1], 72      ; ws
    s_load_dwordx2 s[16:17], s[0:1], 8     ; wqkv
    s_load_dwordx4 s[24:27], s[0:1], 32
    s_and_b32 s13, s2, 7
    s_lshl_b32 s13, s13, 2
    s_lshr_b32 s3, s2, 3
    s_and_b32 s3, s3, 3
    s_add_u32 s13, s13, s3                 ; ng
    s_lshr_b32 s12, s2, 5                  ; mb
    v_lshrrev_b32 v1, 6, v0
    v_and_b32 v2, 63, v0                   ; lane
    s_nop 0
    v_readfirstlane_b32 s14, v1            ; wave
    s_mul_i32 s21, s14, 5120
    s_lshl_b32 s22, s12, 8
    s_lshl_b32 s23, s14, 6
    s_add_u32 s22, s22, s23
    v_and_b32 v3, 31, v2
    v_add_u32 v3, s22, v3
    v_lshrrev_b32 v4, 5, v2                ; v4 = h
    s_lshr_b32 s23, s22, 5
    s_mul_i32 s23, s23, 40960
    v_lshlrev_b32 v50, 4, v2
    v_add_u32 v50, s23, v50
    v_add_u32 v51, 40960, v50
    v_mul_u32_u24 v52, 2560, v4
    v_and_b32 v5, 15, v2
    v_lshrrev_b32 v5, 2, v5
    v_mul_u32_u24 v5, 320, v5
    v_add_u32 v52, v52, v5
    v_lshrrev_b32 v5, 4, v2
    v_and_b32 v5, 1, v5
    v_mul_u32_u24 v5, 160, v5
    v_add_u32 v52, v52, v5
    v_and_b32 v5, 3, v2
    v_lshl_add_u32 v52, v5, 3, v52
    v_add_u32 v53, 40960, v52
    s_waitcnt lgkmcnt(0)
    ''')
    ws_srd(k, 8, 6)
    k(f'''
    s_add_u32 s4, s6, {XN}
    s_addc_u32 s5, s7, 0
    s_mul_i32 s23, s14, 320
    v_add_u32 v6, s23, v2                  ; p for j=0
    s_cmp_ge_u32 s13, 12
    s_cbranch_scc1 L_k1_ffn_addr
    s_mul_i32 s23, s13, 320                ; ncol0*2
    s_add_u32 s16, s16, s23
    s_addc_u32 s17, s17, 0
    s_mov_b32 s20, 245760                  ; 64*3840
    ''')
    for j in range(5):
        k(f'''
        v_add_u32 v7, {64*j}, v6
        v_mul_u32_u24 v8, 3277, v7
        v_lshrrev_b32 v8, 16, v8           ; kk
        v_mul_u32_u24 v9, 20, v8
        v_sub_u32 v9, v7, v9               ; c
        v_mul_u32_u24 v8, 3840, v8
        v_lshl_add_u32 v8, v9, 4, v8
        v_mov_b32 v{41+2*j}, s17
        v_add_co_u32 v{40+2*j}, vcc, s16, v8
        v_addc_co_u32 v{41+2*j}, vcc, 0, v{41+2*j}, vcc
        ''')
    k('s_branch L_k1_addr_done')
    k.label('L_k1_ffn_addr')
    k('''
    s_sub_u32 s28, s13, 12
    s_mul_i32 s29, s28, 5
    s_lshl_b32 s30, s28, 2
    s_add_u32 s30, s30, 15
    s_cmp_ge_u32 s28, 16
    s_cselect_b32 s29, s30, s29
    s_cselect_b32 s31, 1, 0
    s_lshl_b32 s29, s29, 5                 ; u0*32 bytes
    s_add_u32 s24, s24, s29
    s_addc_u32 s25, s25, 0
    s_add_u32 s26, s26, s29
    s_addc_u32 s27, s27, 0
    s_sub_u32 s26, s26, 160
    s_subb_u32 s27, s27, 0
    s_mov_b32 s20, 196608                  ; 64*3072
    v_mov_b32 v10, s24
    v_mov_b32 v11, s25
    v_mov_b32 v12, s26
    v_mov_b32 v13, s27
    ''')
    for j in range(5):
        k(f'''
        v_add_u32 v7, {64*j}, v6
        v_mul_u32_u24 v8, 3277, v7
        v_lshrrev_b32 v8, 16, v8           ; kk
        v_mul_u32_u24 v9, 20, v8
        v_sub_u32 v9, v7, v9               ; c
        v_mul_u32_u24 v8, 3072, v8
        v_lshl_add_u32 v8, v9, 4, v8
        v_cmp_le_u32 vcc, 10, v9
        s_nop 1
        v_cndmask_b32 v15, v10, v12, vcc
        v_cndmask_b32 v{41+2*j}, v11, v13, vcc
        v_add_co_u32 v{40+2*j}, vcc, v15, v8
        v_addc_co_u32 v{41+2*j}, vcc, 0, v{41+2*j}, vcc
        ''')
    k.label('L_k1_addr_done')
    k('''
    s_cmp_ge_u32 s13, 8
    s_cbranch_scc0 L_k1_main_n
    s_cmp_lt_u32 s13, 12
    s_cbranch_scc1 L_k1_main_v
    ''')
    k.label('L_k1_main_n')
    k1_mainloop(k, False)
    k('''
    s_cmp_ge_u32 s13, 12
    s_cbranch_scc1 L_k1_epi_ffn
    ''')
    k(f'''
    s_mov_b32 s28, {QF}
    s_mov_b32 s29, {KF}
    s_cmp_ge_u32 s13, 4
    s_cselect_b32 s28, s29, s28
    s_and_b32 s29, s13, 3
    s_mul_i32 s29, s29, {8*98304}
    s_add_u32 s28, s28, s29
    v_lshrrev_b32 v5, 4, v3
    v_mul_u32_u24 v5, 768, v5
    v_and_b32 v6, 15, v3
    v_lshl_add_u32 v5, v6, 4, v5           ; keypart
    v_lshl_add_u32 v6, v4, 3, v5           ; diff 8
    v_mul_u32_u24 v7, 248, v4
    v_add_u32 v7, v7, v5                   ; diff 248
    v_mul_u32_u24 v16, {98304-512}, v4
    v_add_u32 v16, v16, v5
    ''')
    def off(G):
        return (G // 5) * 98304 + ((G % 5) >> 1) * 256 + ((G % 5) & 1) * 8
    cnt = 0
    for t in range(5):
        for sub in range(2):
            a = acc(t, sub)
            for q in range(4):
                G0 = (q >> 1) * 20 + 4 * t + 2 * (q & 1)
                df = off(G0 + 1) - off(G0)
                va = {8: 6, 248: 7, 98304 - 512: 16}[df]
                d = 8 + (cnt % 4) * 2
                cnt += 1
                k(f'v_cvt_pk_bf16_f32 v{d}, v{a+4*q}, v{a+4*q+1}')
                k(f'v_cvt_pk_bf16_f32 v{d+1}, v{a+4*q+2}, v{a+4*q+3}')
                k(f's_add_u32 s29, s28, {off(G0)}')
                k.vmem(f'buffer_store_dwordx2 v[{d}:{d+1}], v{va}, s[8:11], s29 offen offset:{sub*1536}')
    k('''
    v_add_u32 v5, s22, v2
    v_lshrrev_b32 v6, 4, v5
    v_mul_u32_u24 v6, 768, v6
    v_and_b32 v5, 15, v5
    v_lshl_add_u32 v5, v5, 4, v6
    v_mov_b32 v18, 0
    v_mov_b32 v19, 0
    ''')
    for j in range(8):
        k(f's_add_u32 s29, s28, {j*98304}')
        k.vmem(f'buffer_store_dwordx2 v[18:19], v5, s[8:11], s29 offen offset:520')
    k('s_branch L_k1_end')
    k.label('L_k1_epi_ffn')
    k(f'''
    s_lshl_b32 s28, s29, 4                 ; (j0>>3)*256 = u0*2*256 = (u0*32)*16
    s_add_u32 s28, s28, {HF}
    s_add_u32 s30, s28, 98304
    v_lshrrev_b32 v5, 4, v3
    v_mul_u32_u24 v5, 49152, v5
    v_and_b32 v6, 15, v3
    v_lshl_add_u32 v5, v6, 4, v5
    v_lshl_add_u32 v5, v4, 8, v5           ; + hh*256
    s_mov_b32 s33, {f32hex(-LOG2E)}
    ''')
    cnt = 0
    for t in range(5):
        if t == 0:
            k('''
            s_cmp_lg_u32 s31, 0
            s_cbranch_scc1 L_k1_ffn_skip0
            ''')
        for sub in range(2):
            a = acc(t, sub)
            d = 16 + (cnt % 2) * 4
            cnt += 1
            for q in range(2):
                for pr in range(2):
                    g0, g1 = a + 4 * q + 2 * pr, a + 4 * q + 2 * pr + 1
                    u0, u1 = g0 + 8, g1 + 8
                    k(f'''
                    v_cvt_pk_bf16_f32 v8, v{g0}, v{g1}
                    v_cvt_pk_bf16_f32 v9, v{u0}, v{u1}
                    v_lshlrev_b32 v10, 16, v8
                    v_and_b32 v11, 0xffff0000, v8
                    v_mul_f32 v12, s33, v10
                    v_mul_f32 v13, s33, v11
                    v_exp_f32 v12, v12
                    v_exp_f32 v13, v13
                    v_lshlrev_b32 v14, 16, v9
                    v_and_b32 v15, 0xffff0000, v9
                    v_add_f32 v12, 1.0, v12
                    v_add_f32 v13, 1.0, v13
                    v_rcp_f32 v12, v12
                    v_rcp_f32 v13, v13
                    s_nop 0
                    v_mul_f32 v10, v10, v12
                    v_mul_f32 v11, v11, v13
                    v_cvt_pk_bf16_f32 v8, v10, v11
                    v_lshlrev_b32 v10, 16, v8
                    v_and_b32 v11, 0xffff0000, v8
                    v_mul_f32 v10, v10, v14
                    v_mul_f32 v11, v11, v15
                    v_cvt_pk_bf16_f32 v{d + 2*q + pr}, v10, v11
                    ''')
            k('s_nop 1')
            k(f'v_permlane32_swap_b32 v{d}, v{d+2}')
            k(f'v_permlane32_swap_b32 v{d+1}, v{d+3}')
            so = 's30' if sub else 's28'
            k.vmem(f'buffer_store_dwordx4 v[{d}:{d+3}], v5, s[8:11], {so} offen offset:{t*512}')
        if t == 0:
            k.label('L_k1_ffn_skip0')
    k('s_branch L_k1_end')
    k.label('L_k1_main_v')
    k.vm = []; k.lg = []
    k1_mainloop(k, True)
    k(f'''
    s_sub_u32 s28, s13, 8
    s_mul_i32 s28, s28, {8*81920}
    s_lshr_b32 s29, s22, 5
    s_mul_i32 s29, s29, 1280
    s_add_u32 s28, s28, s29
    s_add_u32 s28, s28, {VF}
    v_and_b32 v5, 15, v2
    v_lshrrev_b32 v6, 4, v2
    v_and_b32 v6, 1, v6
    v_mul_u32_u24 v6, 80, v6
    v_add_u32 v5, v5, v6
    v_mov_b32 v20, 256
    v_mov_b32 v21, 64
    ''')
    cnt = 0
    for t in range(5):
        k(f'''
        v_add_u32 v6, {16*t}, v5           ; col
        v_mul_u32_u24 v7, 3277, v6
        v_lshrrev_b32 v7, 16, v7           ; head
        v_mul_u32_u24 v16, 20, v7
        v_sub_u32 v6, v6, v16              ; d
        v_mul_u32_u24 v7, 81920, v7
        v_lshlrev_b32 v16, 4, v6           ; d*16
        v_add_u32 v17, 768, v16            ; 1024 + (d-16)*16
        v_cmp_gt_u32 vcc, 16, v6
        s_nop 1
        v_cndmask_b32 v16, v17, v16, vcc
        v_cndmask_b32 v17, v21, v20, vcc   ; gs
        v_add_u32 v7, v7, v16
        v_mad_u32_u24 v18, v17, v4, v7
        v_lshl_add_u32 v19, v17, 1, v18    ; va1
        ''')
        for sub in range(2):
            a = acc(t, sub)
            for q in range(4):
                d = 8 + (cnt % 4) * 2
                cnt += 1
                k(f'v_cvt_pk_bf16_f32 v{d}, v{a+4*q}, v{a+4*q+1}')
                k(f'v_cvt_pk_bf16_f32 v{d+1}, v{a+4*q+2}, v{a+4*q+3}')
                k.vmem(f'buffer_store_dwordx2 v[{d}:{d+1}], v{18 + (q&1)}, s[8:11], s28 offen offset:{sub*1280 + (q>>1)*8}')
    k.label('L_k1_end')
    k.stamp(5)
    k('s_waitcnt vmcnt(0)')
    k.stamp(6)
    if 'ts' in EXP: k('s_memrealtime s[86:87]')
    k.stamp_flush(9, 6)
    k.label('L_k1_done')
    k('s_endpgm')
    return k.text(), kernel_desc('gemm1_kernel', 256 + 96, 100, 256)

K2_VOFF = 24576
K2_LDS = K2_VOFF + 15360 + 1024
def gen_k2():
    k = K()
    k.raw(kernel_header('attn_kernel'))
    S0 = 64
    def S(a, kt):
        return S0 + (a * 18 + kt) * 4
    KF0 = 32
    QR = 48
    VF0 = 208
    OA = 240
    k(f'''
    s_cmp_ge_u32 s2, 512
    s_cbranch_scc1 L_k2_done
    ''')
    k.stamp(0)
    if 'ts' in EXP: k('s_memrealtime s[84:85]')
    k(f'''
    s_load_dwordx2 s[6:7], s[0:1], 72
    s_lshr_b32 s12, s2, 4                  ; head
    s_and_b32 s13, s2, 15
    s_lshl_b32 s13, s13, 7                 ; q0
    v_lshrrev_b32 v1, 6, v0
    v_and_b32 v2, 63, v0
    s_nop 0
    v_readfirstlane_b32 s14, v1            ; wave
    v_lshlrev_b32 v3, 4, v2                ; lane*16
    s_lshr_b32 s15, s13, 4
    s_mul_i32 s16, s14, 6
    s_add_u32 s15, s15, s16
    s_sub_u32 s15, s15, 16
    s_mul_i32 s15, s15, 768
    s_mul_i32 s16, s12, 98304
    s_add_u32 s15, s15, s16
    s_add_u32 s15, s15, {KF}
    s_mul_i32 s17, s14, 6144
    s_lshr_b32 s20, s13, 5
    s_sub_u32 s20, s20, 8
    s_mul_i32 s20, s20, 1280
    s_mul_i32 s21, s12, 81920
    s_add_u32 s20, s20, s21
    s_lshl_b32 s21, s14, 12
    s_add_u32 s20, s20, s21
    s_add_u32 s20, s20, {VF}
    s_add_u32 s21, s21, {K2_VOFF}
    v_mov_b32 v{QR}, 0
    v_mov_b32 v{QR+1}, 0
    v_mov_b32 v{QR+2}, 0
    v_mov_b32 v{QR+3}, 0
    v_mov_b32 v{QR+4}, 0
    v_mov_b32 v{QR+5}, 0
    v_mov_b32 v{QR+6}, 0
    v_mov_b32 v{QR+7}, 0
    s_waitcnt lgkmcnt(0)
    s_add_u32 s18, s6, s15
    s_addc_u32 s19, s7, 0
    s_add_u32 s22, s6, s20
    s_addc_u32 s23, s7, 0
    s_mov_b32 m0, s21
    s_nop 0
    ''')
    for j in range(3):
        k.vmem(f'global_load_lds_dwordx4 v3, s[22:23] offset:{j*1024}', 'dma')
    lb = k.newlabel('L_k2_v3')
    k('s_cmp_eq_u32 s14, 3')
    k(f's_cbranch_scc1 {lb}')
    k(f'global_load_lds_dwordx4 v3, s[22:23] offset:3072')
    k.label(lb)
    k('s_mov_b32 exec_hi, 0xffff')
    for j in range(6):
        k(f's_add_u32 m0, s17, {j*1024}')
        k('s_nop 0')
        k.vmem(f'global_load_lds_dwordx4 v3, s[18:19]', 'dma')
        k('s_add_u32 s18, s18, 768')
        k('s_addc_u32 s19, s19, 0')
    k(f'''
    s_lshl_b32 s24, s14, 5                 ; 32w
    s_add_u32 s25, s13, s24                ; q0 + 32w
    s_lshr_b32 s26, s25, 4
    s_mul_i32 s26, s26, 768
    s_mul_i32 s27, s12, 98304
    s_add_u32 s26, s26, s27
    s_add_u32 s26, s26, {QF}
    s_add_u32 s18, s6, s26
    s_addc_u32 s19, s7, 0
    ''')
    k.vmem(f'global_load_dwordx4 v[{QR}:{QR+3}], v3, s[18:19]', 'q')
    k.vmem(f'global_load_dwordx4 v[{QR+4}:{QR+7}], v3, s[18:19] offset:768', 'q')
    k('s_mov_b64 exec, -1')
    k(f'''
    v_and_b32 v5, 15, v2                   ; l&15
    v_lshrrev_b32 v6, 4, v2                ; g
    v_lshlrev_b32 v7, 10, v6
    v_lshl_add_u32 v7, v5, 4, v7
    v_add_u32 v7, s17, v7
    v_mov_b32 v12, 0
    v_mov_b32 v13, 0
    v_mov_b32 v14, 0
    v_mov_b32 v15, 0
    ds_write_b128 v7, v[12:15] offset:768
    s_mov_b32 exec_hi, 0
    ds_write_b128 v7, v[12:15] offset:{4096+768}
    s_mov_b64 exec, -1
    s_lshl_b32 s26, s14, 11                ; 2w*1024
    v_add_u32 v8, s26, v3
    s_mul_i32 s26, s14, 1280
    s_add_u32 s26, s26, {K2_VOFF}
    v_add_u32 v9, s26, v3
    v_and_b32 v10, 3, v5
    v_lshlrev_b32 v10, 4, v10
    v_lshl_add_u32 v10, v6, 6, v10
    v_add_u32 v10, s26, v10
    s_sub_u32 s25, s25, 256
    v_lshlrev_b32 v11, 2, v6
    v_sub_u32 v11, v5, v11                 ; (l&15) - 4g
    v_cmp_le_i32 s[32:33], 0, v11
    v_cmp_le_i32 s[34:35], 1, v11
    v_cmp_le_i32 s[36:37], 2, v11
    v_cmp_le_i32 s[38:39], 3, v11
    v_mov_b32 v11, 0xff800000              ; -inf
    s_mov_b32 s40, {f32hex(LOG2E * 20 ** -0.5)}
    s_waitcnt lgkmcnt(0)
    ''')
    k.wait_vm_all()
    k('s_barrier')
    k.stamp(1)
    PD = 3
    def kread(kt):
        d = KF0 + (kt % 4) * 4
        k.lds(f'ds_read_b128 v[{d}:{d+3}], v8 offset:{kt*1024}', ('k', kt))
    for kt in range(PD):
        kread(kt)
    for kt in range(18):
        if kt + PD < 18:
            kread(kt + PD)
        k.wait_lg(('k', kt))
        d = KF0 + (kt % 4) * 4
        for a in range(2):
            if (a == 0 and kt == 17) or (a == 1 and kt == 0):
                continue
            s = S(a, kt)
            k(f'v_mfma_f32_16x16x32_bf16 v[{s}:{s+3}], v[{d}:{d+3}], v[{QR+4*a}:{QR+4*a+3}], 0')
    def vread(p):
        d = VF0 + (p % 4) * 8
        k.lds(f'ds_read_b128 v[{d}:{d+3}], v9 offset:{p*1280}', ('v', p))
        k.lds(f'ds_read_b128 v[{d+4}:{d+7}], v10 offset:{p*1280 + 1024}', ('v', p))
    for p in range(3):
        vread(p)
    k('s_nop 7')
    k('s_nop 1')
    k.stamp(2)
    for p in range(8):
        lb = k.newlabel('L_k2_v')
        k(f's_cmp_ge_i32 s25, {-32*p}')
        k(f's_cbranch_scc1 {lb}')
        for a in range(2):
            for kt in (2 * p, 2 * p + 1):
                if (a == 0 and kt == 17) or (a == 1 and kt == 0):
                    continue
                for r in range(4):
                    k(f'v_mov_b32 v{S(a,kt)+r}, v11')
        k.label(lb)
    for a in range(2):
        for r in range(4):
            s = S(a, a) + r
            k(f'v_cndmask_b32 v{s}, v{s}, v11, s[{32+2*r}:{33+2*r}]')
            s = S(a, a + 16) + r
            k(f'v_cndmask_b32 v{s}, v11, v{s}, s[{32+2*r}:{33+2*r}]')
    for a in range(2):
        regs = [S(a, kt) + r for kt in range(a, a + 17) for r in range(4)]
        m = 12 + a
        k(f'v_max3_f32 v{m}, v{regs[0]}, v{regs[1]}, v{regs[2]}')
        i = 3
        while i < len(regs):
            if i + 1 < len(regs):
                k(f'v_max3_f32 v{m}, v{m}, v{regs[i]}, v{regs[i+1]}')
                i += 2
            else:
                k(f'v_max_f32 v{m}, v{m}, v{regs[i]}')
                i += 1
    def xlane(op, r):
        k(f'''
        v_mov_b32 v16, v{r}
        s_nop 1
        v_permlane32_swap_b32 v16, v{r}
        s_nop 1
        {op} v{r}, v{r}, v16
        v_mov_b32 v16, v{r}
        s_nop 1
        v_permlane16_swap_b32 v16, v{r}
        s_nop 1
        {op} v{r}, v{r}, v16
        ''')
    for a in range(2):
        xlane('v_max_f32', 12 + a)
        k(f'v_mul_f32 v{12+a}, s40, v{12+a}')
    k.stamp(3)
    for a in range(2):
        k(f'v_mov_b32 v{14+a}, 0')
        for kt in range(a, a + 17):
            s = S(a, kt)
            for r in range(4):
                k(f'v_fma_f32 v{s+r}, v{s+r}, s40, -v{12+a}')
            for r in range(4):
                k(f'v_exp_f32 v{s+r}, v{s+r}')
            k('s_nop 0')
            k(f'v_add_f32 v17, v{s}, v{s+1}')
            k(f'v_add_f32 v18, v{s+2}, v{s+3}')
            k(f'v_add_f32 v17, v17, v18')
            k(f'v_add_f32 v{14+a}, v{14+a}, v17')
    for a in range(2):
        for p in range(9):
            s0, s1 = S(a, 2 * p), S(a, 2 * p + 1)
            if a == 1 and p == 0:
                k(f'v_mov_b32 v{s0}, 0')
                k(f'v_mov_b32 v{s0+1}, 0')
            else:
                k(f'v_cvt_pk_bf16_f32 v{s0}, v{s0}, v{s0+1}')
                k(f'v_cvt_pk_bf16_f32 v{s0+1}, v{s0+2}, v{s0+3}')
            if a == 0 and p == 8:
                k(f'v_mov_b32 v{s0+2}, 0')
                k(f'v_mov_b32 v{s0+3}, 0')
            else:
                k(f'v_cvt_pk_bf16_f32 v{s0+2}, v{s1}, v{s1+1}')
                k(f'v_cvt_pk_bf16_f32 v{s0+3}, v{s1+2}, v{s1+3}')
    for a in range(2):
        xlane('v_add_f32', 14 + a)
        k(f'v_rcp_f32 v{14+a}, v{14+a}')
    k.stamp(4)
    for p in range(9):
        if p + 3 < 9:
            vread(p + 3)
        k.wait_lg(('v', p))
        d = VF0 + (p % 4) * 8
        for a in range(2):
            for dt in range(2):
                o = OA + (a * 2 + dt) * 4
                cin = '0' if p == 0 else f'v[{o}:{o+3}]'
                s0 = S(a, 2 * p)
                k(f'v_mfma_f32_16x16x32_bf16 v[{o}:{o+3}], v[{d+4*dt}:{d+4*dt+3}], v[{s0}:{s0+3}], {cin}')
    k(f'''
    s_add_u32 s26, s13, s24
    s_lshr_b32 s26, s26, 4
    s_mul_i32 s26, s26, 20480
    s_add_u32 s26, s26, {OF}
    s_add_u32 s18, s6, s26
    s_addc_u32 s19, s7, 0
    s_mul_i32 s27, s12, 20
    v_lshl_add_u32 v20, v6, 2, s27
    v_add_u32 v22, 16, v20
    v_lshrrev_b32 v21, 3, v20
    v_lshlrev_b32 v21, 8, v21
    v_and_b32 v20, 4, v20
    v_lshl_add_u32 v21, v20, 1, v21
    v_lshl_add_u32 v20, v5, 4, v21
    v_lshrrev_b32 v21, 3, v22
    v_lshlrev_b32 v21, 8, v21
    v_and_b32 v22, 4, v22
    v_lshl_add_u32 v21, v22, 1, v21
    v_lshl_add_u32 v21, v5, 4, v21
    v_add_u32 v22, 20480, v20
    v_add_u32 v23, 20480, v21
    s_nop 3
    ''')
    for a in range(2):
        for dt in range(2):
            o = OA + (a * 2 + dt) * 4
            for r in range(4):
                k(f'v_mul_f32 v{o+r}, v{o+r}, v{14+a}')
            k(f'v_cvt_pk_bf16_f32 v{o}, v{o}, v{o+1}')
            k(f'v_cvt_pk_bf16_f32 v{o+1}, v{o+2}, v{o+3}')
    for a in range(2):
        o = OA + (a * 2) * 4
        k.vmem(f'global_store_dwordx2 v{20+2*a}, v[{o}:{o+1}], s[18:19]')
    k('s_mov_b64 exec, 0xffff')
    for a in range(2):
        o = OA + (a * 2 + 1) * 4
        k.vmem(f'global_store_dwordx2 v{21+2*a}, v[{o}:{o+1}], s[18:19]')
    k('s_mov_b64 exec, -1')
    k.stamp(5)
    k('s_waitcnt vmcnt(0)')
    k.stamp(6)
    if 'ts' in EXP: k('s_memrealtime s[86:87]')
    k.stamp_flush(9, 6, base=0x3200000)
    k.label('L_k2_done')
    k('s_endpgm')
    return k.text(), kernel_desc('attn_kernel', 256, 100, 256)

K3_SLOT = 10240
K3_LDS = 4 * 3 * K3_SLOT
def k3_body(k, nblk):
    AC0 = 16
    XA0 = 96
    WF = 192
    OFFS = 216
    AV = 226
    TR = 230
    R = 6; PD = 4
    nfr = nblk * 10
    def frag_read(n):
        b, r = divmod(n, 10)
        s, t = divmod(r, 5)
        off = (b % 3) * K3_SLOT + (32 * s) * 160 + t * 32
        d = WF + (n % R) * 4
        k.lds(f'ds_read_b64_tr_b16 v[{d}:{d+1}], v{TR} offset:{off}', ('fr', n))
        k.lds(f'ds_read_b64_tr_b16 v[{d+2}:{d+3}], v{TR} offset:{off + 8*160}', ('fr', n))
    def A_ops(b):
        ops = []
        st = XA0 + (b % 3) * 32
        for mt in range(4):
            for s in range(2):
                d = st + (mt * 2 + s) * 4
                def f(d=d, mt=mt, s=s, last=(mt == 3 and s == 1)):
                    k.vmem(f'global_load_dwordx4 v[{d}:{d+3}], v{AV+mt}, s[16:17] offset:{s*1024}', ('A', b))
                    if last:
                        k('s_add_u32 s16, s16, 2048')
                        k('s_addc_u32 s17, s17, 0')
                ops.append(f)
        return ops
    def D_ops(b):
        ops = []
        for j in range(10):
            def f(j=j):
                k(f's_add_u32 m0, s21, {(b % 3)*K3_SLOT + j*1024}')
                k('s_nop 0')
                k.vmem(f'global_load_lds_dwordx4 v{OFFS+j}, s[18:19]', ('D', b))
                if j == 9:
                    k('s_add_u32 s18, s18, 81920')
                    k('s_addc_u32 s19, s19, 0')
            ops.append(f)
        return ops
    for f in D_ops(0) + A_ops(0) + D_ops(1) + A_ops(1):
        f()
    k.wait_vm(('D', 0))
    k.stamp(1)
    for n in range(PD):
        frag_read(n)
    for b in range(nblk):
        k.wait_vm(('A', b))
        if b == 1: k.stamp(2)
        if b == 5: k.stamp(3)
        pend = (D_ops(b + 2) + A_ops(b + 2)) if b + 2 < nblk else []
        for s in range(2):
            for t in range(5):
                n = b * 10 + s * 5 + t
                if n + PD < nfr:
                    if (n + PD) % 10 == 0:
                        k.wait_vm(('D', b + 1))
                    frag_read(n + PD)
                k.wait_lg(('fr', n))
                wf = WF + (n % R) * 4
                for mt in range(4):
                    xa = XA0 + (b % 3) * 32 + (mt * 2 + s) * 4
                    a = AC0 + (mt * 5 + t) * 4
                    cin = '0' if (b == 0 and s == 0) else f'v[{a}:{a+3}]'
                    k(f'v_mfma_f32_16x16x32_bf16 v[{a}:{a+3}], v[{wf}:{wf+3}], v[{xa}:{xa+3}], {cin}')
                    if mt % 2 == 1 and pend:
                        pend.pop(0)()
        while pend:
            pend.pop(0)()
    k('s_nop 7')
    k('s_nop 1')

def gen_k3():
    k = K()
    k.raw(kernel_header('gemm2_kernel'))
    AC0 = 16; OFFS = 216; AV = 226; TR = 230
    k(f'''
    s_cmp_ge_u32 s2, 256
    s_cbranch_scc1 L_k3_done
    ''')
    k.stamp(0)
    if 'ts' in EXP: k('s_memrealtime s[84:85]')
    k(f'''
    s_load_dwordx2 s[4:5], s[0:1], 0       ; x
    s_load_dwordx2 s[8:9], s[0:1], 16      ; wo
    s_load_dwordx2 s[10:11], s[0:1], 48    ; w_down
    s_load_dwordx2 s[24:25], s[0:1], 56    ; out
    s_load_dwordx2 s[6:7], s[0:1], 72      ; ws
    s_and_b32 s12, s2, 7
    s_lshl_b32 s12, s12, 2
    s_lshr_b32 s3, s2, 3
    s_and_b32 s3, s3, 3
    s_add_u32 s12, s12, s3                 ; m tile (0..31)
    s_lshr_b32 s13, s2, 5                  ; n tile (0..7)
    s_mul_i32 s13, s13, 160                ; n0*2 bytes
    v_lshrrev_b32 v1, 6, v0
    v_and_b32 v2, 63, v0
    s_nop 0
    v_readfirstlane_b32 s14, v1            ; wave
    s_mul_i32 s21, s14, {3*K3_SLOT}
    v_and_b32 v3, 15, v2                   ; l&15
    v_lshrrev_b32 v4, 4, v2                ; g
    v_lshrrev_b32 v5, 2, v3
    v_and_b32 v6, 1, v4
    v_lshl_add_u32 v5, v6, 2, v5
    v_lshrrev_b32 v6, 1, v4
    v_lshl_add_u32 v5, v6, 4, v5
    v_mul_u32_u24 v5, 160, v5
    v_and_b32 v6, 3, v3
    v_lshl_add_u32 v5, v6, 3, v5
    v_add_u32 v{TR}, s21, v5
    ''')
    for j in range(10):
        k(f'''
        v_add_u32 v5, {64*j}, v2
        v_mul_u32_u24 v6, 6554, v5
        v_lshrrev_b32 v6, 16, v6           ; rho
        v_mul_u32_u24 v7, 10, v6
        v_sub_u32 v7, v5, v7               ; c
        v_and_b32 v8, 0x33, v6
        v_bfe_u32 v9, v6, 2, 1             ; g_lo
        v_lshl_add_u32 v8, v9, 3, v8
        v_bfe_u32 v9, v6, 3, 1             ; u
        v_lshl_add_u32 v8, v9, 2, v8       ; k
        v_mul_u32_u24 v8, 1280, v8
        v_lshl_add_u32 v{OFFS+j}, v7, 4, v8
        ''')
    k('''
    v_lshlrev_b32 v5, 4, v2                ; lane*16
    s_waitcnt lgkmcnt(0)
    s_cmp_lg_u32 s14, 0
    s_cbranch_scc1 L_k3_ffn
    ''')
    k(f'''
    s_mul_i32 s22, s12, {4*20480}
    s_add_u32 s22, s22, {OF}
    s_add_u32 s16, s6, s22
    s_addc_u32 s17, s7, 0
    s_add_u32 s18, s8, s13
    s_addc_u32 s19, s9, 0
    v_mov_b32 v{AV}, v5
    v_add_u32 v{AV+1}, 20480, v5
    v_add_u32 v{AV+2}, 40960, v5
    v_add_u32 v{AV+3}, 61440, v5
    ''')
    k3_body(k, 10)
    k('s_branch L_k3_red')
    k.label('L_k3_ffn')
    k.vm = []; k.lg = []
    k(f'''
    s_sub_u32 s15, s14, 1                  ; third
    s_lshl_b32 s22, s15, 14
    s_mul_i32 s23, s12, {4*49152}
    s_add_u32 s22, s22, s23
    s_add_u32 s22, s22, {HF}
    s_add_u32 s16, s6, s22
    s_addc_u32 s17, s7, 0
    s_mul_i32 s22, s15, 655360             ; 512*1280
    s_add_u32 s22, s22, s13
    s_add_u32 s18, s10, s22
    s_addc_u32 s19, s11, 0
    v_mov_b32 v{AV}, v5
    v_add_u32 v{AV+1}, 49152, v5
    v_add_u32 v{AV+2}, 98304, v5
    v_add_u32 v{AV+3}, 147456, v5
    ''')
    k3_body(k, 8)
    k.label('L_k3_red')
    k.stamp(4)
    k.vm = []; k.lg = []
    k('s_lshl_b32 s12, s12, 6                 ; row0')
    for r in range(3):
        k(f'''
        v_add_u32 v6, {256*r}, v0
        v_mul_u32_u24 v7, 6554, v6
        v_lshrrev_b32 v7, 16, v7           ; m
        v_mul_u32_u24 v8, 10, v7
        v_sub_u32 v8, v6, v8               ; c
        v_add_u32 v9, s12, v7
        v_mul_u32_u24 v9, 1280, v9
        v_lshl_add_u32 v9, v8, 4, v9
        v_add_u32 v{96+r}, s13, v9
        v_lshrrev_b32 v9, 4, v7
        v_mul_u32_u24 v9, 5, v9
        v_lshrrev_b32 v10, 1, v8
        v_add_u32 v9, v9, v10              ; tile
        v_lshlrev_b32 v9, 10, v9
        v_and_b32 v10, 1, v8
        v_lshl_add_u32 v9, v10, 9, v9      ; + (c&1)*2*256
        v_and_b32 v10, 15, v7
        v_lshl_add_u32 v{100+r}, v10, 4, v9
        v_add_u32 v{104+r}, 40960, v{100+r}
        ''')
    k('v_cmp_gt_u32 vcc, 128, v0')
    k('s_nop 3')
    k('s_mov_b64 s[26:27], vcc')
    for r in range(2):
        k.vmem(f'global_load_dwordx4 v[{108+4*r}:{111+4*r}], v{96+r}, s[4:5]', 'x')
    k('s_mov_b64 exec, s[26:27]')
    k('s_cbranch_execz L_k3_nox')
    k.vmem(f'global_load_dwordx4 v[116:119], v98, s[4:5]', 'x')
    k.label('L_k3_nox')
    k('s_mov_b64 exec, -1')
    k('s_barrier')
    k('''
    s_mul_i32 s22, s14, 20480
    v_add_u32 v7, s22, v5
    ''')
    for tl in range(20):
        a = AC0 + tl * 4
        k.lds(f'ds_write_b128 v7, v[{a}:{a+3}] offset:{tl*1024}')
    k.wait_lg_all()
    k('s_barrier')
    k.stamp(5)
    for r in range(3):
        for w in range(4):
            for hf in range(2):
                d = 120 + r * 32 + (w * 2 + hf) * 4
                k.lds(f'ds_read_b128 v[{d}:{d+3}], v{(100 if w < 2 else 104) + r} offset:{(w&1)*20480 + hf*256}', ('r', r))
    k.wait_vm_all()
    for r in range(3):
        k.wait_lg(('r', r))
        p0 = 120 + r * 32
        for e in range(8):
            k(f'v_add_f32 v{p0+8+e}, v{p0+8+e}, v{p0+16+e}')
            k(f'v_add_f32 v{p0+8+e}, v{p0+8+e}, v{p0+24+e}')
        for h in range(4):
            a0, a1 = p0 + 2 * h, p0 + 2 * h + 1
            f0, f1 = a0 + 8, a1 + 8
            xr = 108 + 4 * r + h
            k(f'''
            v_cvt_pk_bf16_f32 v8, v{a0}, v{a1}
            v_cvt_pk_bf16_f32 v9, v{f0}, v{f1}
            v_lshlrev_b32 v10, 16, v8
            v_and_b32 v11, 0xffff0000, v8
            v_lshlrev_b32 v12, 16, v{xr}
            v_and_b32 v13, 0xffff0000, v{xr}
            v_add_f32 v10, v10, v12
            v_add_f32 v11, v11, v13
            v_cvt_pk_bf16_f32 v8, v10, v11
            v_lshlrev_b32 v10, 16, v8
            v_and_b32 v11, 0xffff0000, v8
            v_lshlrev_b32 v12, 16, v9
            v_and_b32 v13, 0xffff0000, v9
            v_add_f32 v10, v10, v12
            v_add_f32 v11, v11, v13
            v_cvt_pk_bf16_f32 v{xr}, v10, v11
            ''')
        if r == 2:
            k('s_mov_b64 exec, s[26:27]')
            k('s_cbranch_execz L_k3_nost')
        k.vmem(f'global_store_dwordx4 v{96+r}, v[{108+4*r}:{111+4*r}], s[24:25]')
    k.label('L_k3_nost')
    k('s_waitcnt vmcnt(0)')
    k('s_mov_b64 exec, -1')
    k.stamp(6)
    if 'ts' in EXP: k('s_memrealtime s[86:87]')
    k.stamp_flush(9, 6, base=0x3100000)
    k.label('L_k3_done')
    k('s_endpgm')
    return k.text(), kernel_desc('gemm2_kernel', 232, 100, 232)

HEADER = open('parallel_sum__sliding_block__swiglu_ffn__prompt.s.ref').read().split('; Override launch')[0]

def main(path):
    parts = [gen_ln(), gen_k1(), gen_k2(), gen_k3()]
    s = HEADER
    s += '; @launch kernel=ln_kernel grid=(128,1,1) block=(256,1,1) lds=0\n'
    s += f'; @launch kernel=gemm1_kernel grid=(256,1,1) block=(256,1,1) lds={K1_RING*K1_BUF}\n'
    s += f'; @launch kernel=attn_kernel grid=(512,1,1) block=(256,1,1) lds={K2_LDS}\n'
    s += f'; @launch kernel=gemm2_kernel grid=(256,1,1) block=(256,1,1) lds={K3_LDS}\n'
    s += '.amdgcn_target "amdgcn-amd-amdhsa--gfx950"\n.text\n'
    for t, d in parts:
        s += t
    s += '.section .rodata,"a"\n'
    for t, d in parts:
        s += '.p2align 6\n' + d
    open(path, 'w').write(s)

if __name__ == '__main__':
    main(sys.argv[1] if len(sys.argv) > 1 else 'parallel_sum__sliding_block__swiglu_ffn__prompt.s')
```

```python
import sys, os
from asmlib import *
EXP = os.environ.get('EXP', '')

XN = 0x0000000
QF = 0x0400000
KF = 0x0800000
VF = 0x0B00000
HF = 0x1000000
OF = 0x1800000
W3F = 0x1C00000
WS_BYTES = 268435456
LOG2E = 1.4426950408889634

def f32hex(x):
    import struct
    return '0x%08x' % struct.unpack('<I', struct.pack('<f', x))[0]

def ws_srd(k, sbase, sptr):
    k(f'''
    s_mov_b32 s{sbase}, s{sptr}
    s_and_b32 s{sbase+1}, s{sptr+1}, 0xffff
    s_mov_b32 s{sbase+2}, {WS_BYTES}
    s_mov_b32 s{sbase+3}, 0x00020000
    ''')

def gen_ln():
    k = K()
    k.raw(kernel_header('ln_kernel'))
    k('''
    s_cmp_ge_u32 s2, 128
    s_cbranch_scc1 L_ln_done
    s_load_dwordx2 s[4:5], s[0:1], 0
    s_load_dwordx2 s[6:7], s[0:1], 72
    v_lshrrev_b32 v1, 4, v0
    s_lshl_b32 s3, s2, 4
    v_add_u32 v1, s3, v1                  ; row
    v_and_b32 v2, 15, v0                  ; i
    v_lshrrev_b32 v3, 5, v1
    v_mul_u32_u24 v3, 40960, v3
    v_and_b32 v73, 31, v1
    v_lshl_add_u32 v3, v73, 4, v3
    v_lshl_add_u32 v3, v2, 9, v3          ; store offset
    v_mul_u32_u24 v1, 1280, v1
    v_lshl_add_u32 v1, v2, 4, v1
    s_waitcnt lgkmcnt(0)
    ''')
    for c in range(5):
        k(f'global_load_dwordx4 v[{4+4*c}:{7+4*c}], v1, s[4:5] offset:{256*c}')
    k('s_waitcnt vmcnt(0)')
    for j in range(20):
        k(f'v_lshlrev_b32 v{32+2*j}, 16, v{4+j}')
        k(f'v_and_b32 v{33+2*j}, 0xffff0000, v{4+j}')
    for a in range(4):
        k(f'v_add_f32 v{24+a}, v{32+a}, v{36+a}')
    for j in range(8, 40, 4):
        for a in range(4):
            k(f'v_add_f32 v{24+a}, v{24+a}, v{32+j+a}')
    k('''
    v_add_f32 v24, v24, v25
    v_add_f32 v26, v26, v27
    v_add_f32 v24, v24, v26
    ''')
    def dpp_reduce(r):
        for sh in (8, 4, 2, 1):
            k('s_nop 1')
            k(f'v_add_f32_dpp v{r}, v{r}, v{r} row_ror:{sh} row_mask:0xf bank_mask:0xf')
    dpp_reduce(24)
    k(f'v_mul_f32 v24, {f32hex(1.0/640)}, v24')
    for a in range(4):
        k(f'v_sub_f32 v72, v{32+a}, v24')
        k(f'v_mul_f32 v{26+a}, v72, v72')
    for j in range(4, 40):
        k(f'v_sub_f32 v72, v{32+j}, v24')
        k(f'v_fmac_f32 v{26+(j&3)}, v72, v72')
    k('''
    v_add_f32 v26, v26, v27
    v_add_f32 v28, v28, v29
    v_add_f32 v26, v26, v28
    ''')
    dpp_reduce(26)
    k(f'v_mul_f32 v26, {f32hex(1.0/640)}, v26')
    k(f'''
    v_cvt_pk_bf16_f32 v27, v24, v26
    v_lshlrev_b32 v24, 16, v27            ; m_b
    v_and_b32 v26, 0xffff0000, v27        ; var_b
    v_add_f32 v26, {f32hex(1e-5)}, v26
    v_cvt_pk_bf16_f32 v27, v26, v26
    v_lshlrev_b32 v26, 16, v27
    v_sqrt_f32 v26, v26
    s_nop 0
    v_cvt_pk_bf16_f32 v27, v26, v26
    v_lshlrev_b32 v26, 16, v27
    v_rcp_f32 v26, v26
    ''')
    for j in range(20):
        a, b = 32 + 2 * j, 33 + 2 * j
        k(f'''
        v_sub_f32 v{a}, v{a}, v24
        v_sub_f32 v{b}, v{b}, v24
        v_cvt_pk_bf16_f32 v72, v{a}, v{b}
        v_lshlrev_b32 v{a}, 16, v72
        v_and_b32 v{b}, 0xffff0000, v72
        v_mul_f32 v{a}, v{a}, v26
        v_mul_f32 v{b}, v{b}, v26
        v_cvt_pk_bf16_f32 v{4+j}, v{a}, v{b}
        ''')
    for c in range(5):
        k(f'global_store_dwordx4 v3, v[{4+4*c}:{7+4*c}], s[6:7]')
        if c < 4:
            k('v_add_u32 v3, 8192, v3')
    k('s_waitcnt vmcnt(0)')
    k.label('L_ln_done')
    k('s_endpgm')
    return k.text(), kernel_desc('ln_kernel', 80, 16, 80)

K1_NCH = 10
K1_RING = 4
K1_BUF = 20480
K1_AOFF = K1_RING * K1_BUF
K1_CS = K1_AOFF + 65536
K1_LDS = K1_CS + 1024
ST = 0x1F00000
ACC0 = 96
WF0 = 64
WFR = 6
def acc(t, sub):
    return ACC0 + (t * 2 + sub) * 16

def stats_loads(k, ld, vaddr, sx, tag):
    for c in range(5):
        k.vmem(f'global_load_dwordx4 v[{ld+4*c}:{ld+4*c+3}], v{vaddr}, s[{sx}:{sx+1}] offset:{256*c}', tag)

def stats_compute(k, ld, up, tmp):
    t0 = tmp
    for j in range(20):
        k(f'v_lshlrev_b32 v{up[2*j]}, 16, v{ld+j}')
        k(f'v_and_b32 v{up[2*j+1]}, 0xffff0000, v{ld+j}')
    for a in range(4):
        k(f'v_add_f32 v{t0+a}, v{up[a]}, v{up[4+a]}')
    for j in range(8, 40, 4):
        for a in range(4):
            k(f'v_add_f32 v{t0+a}, v{t0+a}, v{up[j+a]}')
    k(f"""
    v_add_f32 v{t0}, v{t0}, v{t0+1}
    v_add_f32 v{t0+2}, v{t0+2}, v{t0+3}
    v_add_f32 v{t0}, v{t0}, v{t0+2}
    """)
    def dpp_reduce(r):
        for sh in (8, 4, 2, 1):
            k('s_nop 1')
            k(f'v_add_f32_dpp v{r}, v{r}, v{r} row_ror:{sh} row_mask:0xf bank_mask:0xf')
    dpp_reduce(t0)
    k(f'v_mul_f32 v{t0}, {f32hex(1.0/640)}, v{t0}')
    for a in range(4):
        k(f'v_sub_f32 v{t0+7}, v{up[a]}, v{t0}')
        k(f'v_mul_f32 v{t0+2+a}, v{t0+7}, v{t0+7}')
    for j in range(4, 40):
        k(f'v_sub_f32 v{t0+7}, v{up[j]}, v{t0}')
        k(f'v_fmac_f32 v{t0+2+(j&3)}, v{t0+7}, v{t0+7}')
    k(f"""
    v_add_f32 v{t0+2}, v{t0+2}, v{t0+3}
    v_add_f32 v{t0+4}, v{t0+4}, v{t0+5}
    v_add_f32 v{t0+2}, v{t0+2}, v{t0+4}
    """)
    dpp_reduce(t0 + 2)
    k(f"""
    v_mul_f32 v{t0+2}, {f32hex(1.0/640)}, v{t0+2}
    v_cvt_pk_bf16_f32 v{t0+3}, v{t0}, v{t0+2}
    v_lshlrev_b32 v{t0}, 16, v{t0+3}
    v_and_b32 v{t0+2}, 0xffff0000, v{t0+3}
    v_add_f32 v{t0+2}, {f32hex(1e-5)}, v{t0+2}
    v_cvt_pk_bf16_f32 v{t0+3}, v{t0+2}, v{t0+2}
    v_lshlrev_b32 v{t0+2}, 16, v{t0+3}
    v_sqrt_f32 v{t0+2}, v{t0+2}
    s_nop 0
    v_cvt_pk_bf16_f32 v{t0+3}, v{t0+2}, v{t0+2}
    v_lshlrev_b32 v{t0+2}, 16, v{t0+3}
    v_rcp_f32 v{t0+1}, v{t0+2}
    s_nop 0
    """)

def k1_mainloop(k, vmode):
    PD = 4
    nfr = K1_NCH * 20
    def frag_read(n):
        c, r = divmod(n, 20)
        s, t = divmod(r, 5)
        buf = c % K1_RING
        base = (28 if buf < 2 else 32) + s
        off = (buf & 1) * K1_BUF + t * 32
        d = WF0 + (n % WFR) * 4
        k.lds(f'ds_read_b64_tr_b16 v[{d}:{d+1}], v{base} offset:{off}', ('fr', n))
        k.lds(f'ds_read_b64_tr_b16 v[{d+2}:{d+3}], v{base} offset:{off + 4*320}', ('fr', n))
    def AR_ops(c):
        ops = []
        for sub in range(2):
            for s in range(4):
                d = (c % 2) * 32 + (sub * 4 + s) * 4
                def f(d=d, sub=sub, s=s):
                    if not ('noAR' in EXP and c > 1):
                        k.lds(f'ds_read_b128 a[{d}:{d+3}], v{50+s} offset:{(c % 2)*8192 + sub*4096}', ('A', c))
                ops.append(f)
        return ops
    def AD_ops(c):
        ops = []
        for j in range(8):
            def f(j=j):
                k(f's_add_u32 m0, s34, {(c % 2)*8192 + j*1024}')
                k('s_nop 0')
                if not ('noAD' in EXP and c > 1):
                    k.vmem(f'global_load_lds_dwordx4 v{56+j}, s[4:5]', ('AD', c))
                if j == 7:
                    k('s_add_u32 s4, s4, 128')
                    k('s_addc_u32 s5, s5, 0')
            ops.append(f)
        return ops
    def D_ops(c):
        ops = []
        buf = c % K1_RING
        for j in range(5):
            def f(j=j):
                k(f's_add_u32 m0, s21, {buf*K1_BUF + j*1024}')
                k('s_nop 0')
                if not ('noWD' in EXP and c > 2):
                    k.vmem(f'global_load_lds_dwordx4 v[{40+2*j}:{41+2*j}], off', ('D', c))
                k(f'v_add_co_u32 v{40+2*j}, vcc, s20, v{40+2*j}')
                k(f'v_addc_co_u32 v{41+2*j}, vcc, 0, v{41+2*j}, vcc')
            ops.append(f)
        return ops
    return frag_read, AR_ops, AD_ops, D_ops, PD, nfr

def k1_loop(k, vmode):
    frag_read, AR_ops, AD_ops, D_ops, PD, nfr = k1_mainloop(k, vmode)
    for r in range(10, 25):
        k(f'v_mov_b32 v{r}, 0')
    k.wait_vm(('D', 0))
    k('s_barrier')
    k.stamp(1)
    k.wait_vm(('AD', 0))
    for f in AR_ops(0):
        f()
    for n in range(PD):
        frag_read(n)
    k.wait_lg(('A', 0))
    for f in AD_ops(2):
        f()
    for c in range(K1_NCH):
        if c == 1: k.stamp(2)
        if c == 5 and 'tsx' not in EXP: k.stamp(3)
        pend = []
        for s in range(4):
            for t in range(5):
                n = c * 20 + s * 5 + t
                st = s * 5 + t
                if n + PD < nfr:
                    frag_read(n + PD)
                if st == 2 and c + 1 < K1_NCH:
                    k.wait_vm(('AD', c + 1))
                    pend += AR_ops(c + 1)
                if st == 12 and c + 3 < K1_NCH:
                    k.wait_lg(('A', c + 1))
                    pend += AD_ops(c + 3)
                if st == 0:
                    k.wait_lg(('A', c))
                k.wait_lg(('fr', n))
                wf = WF0 + (n % WFR) * 4
                for sub in range(2):
                    xa = (c % 2) * 32 + (sub * 4 + s) * 4
                    a = acc(t, sub)
                    cin = '0' if (c == 0 and s == 0) else f'v[{a}:{a+15}]'
                    if not vmode:
                        k(f'v_mfma_f32_32x32x16_bf16 v[{a}:{a+15}], v[{wf}:{wf+3}], a[{xa}:{xa+3}], {cin}')
                    else:
                        k(f'v_mfma_f32_32x32x16_bf16 v[{a}:{a+15}], a[{xa}:{xa+3}], v[{wf}:{wf+3}], {cin}')
                    if s == 0 and 'noCS' not in EXP:
                        k(f'v_lshlrev_b32 v36, 16, v{wf+2*sub}')
                        k(f'v_and_b32 v37, 0xffff0000, v{wf+2*sub}')
                        k(f'v_lshlrev_b32 v38, 16, v{wf+2*sub+1}')
                        k(f'v_and_b32 v39, 0xffff0000, v{wf+2*sub+1}')
                        k(f'v_add_f32 v{88+t}, v{88+t}, v36')
                        k(f'v_add_f32 v{10+t}, v{10+t}, v37')
                        k(f'v_add_f32 v{15+t}, v{15+t}, v38')
                        k(f'v_add_f32 v{20+t}, v{20+t}, v39')
                    if pend:
                        pend.pop(0)()
            if s == 1 and c + 1 < K1_NCH:
                k.wait_vm(('D', c + 1))
                k('s_barrier')
                if c == 1:
                    lb = k.newlabel('L_flag')
                    k(f"""
                    s_cmp_lg_u32 s14, 0
                    s_cbranch_scc1 {lb}
                    v_mov_b32 v36, s13
                    v_mov_b32 v37, 1
                    s_mov_b64 exec, 1
                    global_store_byte v36, v37, s[36:37] sc0 sc1
                    s_mov_b64 exec, -1
                    """)
                    k.label(lb)
                if c + 3 < K1_NCH:
                    pend += D_ops(c + 3)
        while pend:
            pend.pop(0)()
    if 'tsx' in EXP: k.stamp(3)
    for t in range(5):
        k(f'v_add_f32 v{88+t}, v{88+t}, v{10+t}')
        k(f'v_add_f32 v{15+t}, v{15+t}, v{20+t}')
    for t in range(5):
        k(f'v_add_f32 v{88+t}, v{88+t}, v{15+t}')
    k(f"""
    v_lshlrev_b32 v5, 2, v2
    v_add_u32 v5, s34, v5                  ; own x staging area (free now): [t][64 lanes] floats
    """)
    for t in range(5):
        k.lds(f'ds_write_b32 v5, v{88+t} offset:{t*256}')
    k.wait_lg_all()
    k('s_barrier')
    k(f"""
    v_lshrrev_b32 v5, 5, v0
    v_lshlrev_b32 v5, 8, v5
    v_and_b32 v6, 31, v0
    v_lshl_add_u32 v5, v6, 2, v5
    v_add_u32 v5, {K1_AOFF}, v5
    """)
    for w in range(4):
        k.lds(f'ds_read2_b32 v[{10+2*w}:{11+2*w}], v5 offset0:{w*320 % 256} offset1:{(w*320+32) % 256}' if False else f'ds_read_b32 v{10+2*w}, v5 offset:{w*16384}')
        k.lds(f'ds_read_b32 v{11+2*w}, v5 offset:{w*16384 + 128}')
    k.wait_lg_all()
    k(f"""
    v_add_f32 v10, v10, v11
    v_add_f32 v12, v12, v13
    v_add_f32 v14, v14, v15
    v_add_f32 v16, v16, v17
    v_add_f32 v10, v10, v12
    v_add_f32 v14, v14, v16
    v_add_f32 v10, v10, v14
    v_lshlrev_b32 v5, 2, v0
    v_add_u32 v5, {K1_CS}, v5
    ds_write_b32 v5, v10
    s_waitcnt lgkmcnt(0)
    s_barrier
    """)
    k.stamp(4)

def k1_get_stats(k, tagn):
    lp = f'L_k1_poll{tagn}'; ok = f'L_k1_ok{tagn}'; fb = f'L_k1_fb{tagn}'
    k(f"""
    s_mov_b32 s40, 4096
    v_and_b32 v5, 7, v2
    v_lshlrev_b32 v5, 2, v5
    s_mov_b32 s41, 0x01010101
    """)
    k.label(lp)
    k(f"""
    global_load_dword v6, v5, s[36:37] sc0 sc1
    s_waitcnt vmcnt(0)
    v_cmp_ne_u32 vcc, s41, v6
    s_nop 3
    s_cmp_eq_u64 vcc, 0
    s_cbranch_scc1 {ok}
    s_sleep 4
    s_sub_u32 s40, s40, 1
    s_cmp_lg_u32 s40, 0
    s_cbranch_scc1 {lp}
    ; ---- fallback: compute stats of this wave's 64 rows here (16 passes of 4 rows)
    v_lshrrev_b32 v5, 4, v2
    v_add_u32 v5, s22, v5                  ; row
    v_lshlrev_b32 v7, 3, v5
    v_mul_u32_u24 v5, 1280, v5
    v_and_b32 v6, 15, v2
    v_lshl_add_u32 v5, v6, 4, v5
    s_mov_b32 s40, 16
    """)
    k.label(fb)
    sv = k.vm; k.vm = []
    stats_loads(k, 8, 5, 38, 'st')
    k.wait_vm_all()
    up = list(range(64, 88)) + list(range(40, 56))
    stats_compute(k, 8, up, 28)
    k(f"""
    s_mov_b32 exec_lo, 0x00010001
    s_mov_b32 exec_hi, 0x00010001
    global_store_dwordx2 v7, v[28:29], s[42:43] sc0 sc1
    s_mov_b64 exec, -1
    v_add_u32 v5, 5120, v5
    v_add_u32 v7, 32, v7
    s_sub_u32 s40, s40, 1
    s_cmp_lg_u32 s40, 0
    s_cbranch_scc1 {fb}
    s_waitcnt vmcnt(0)
    """)
    k.label(ok)
    k.vm = []

def gen_k1():
    k = K()
    k.raw(kernel_header('gemm1_kernel'))
    k("""
    s_cmp_ge_u32 s2, 256
    s_cbranch_scc1 L_k1_done
    """)
    k.stamp(0)
    if 'ts' in EXP: k('s_memrealtime s[84:85]')
    k(f"""
    s_load_dwordx4 s[4:7], s[0:1], 0       ; x, wqkv
    s_load_dwordx4 s[24:27], s[0:1], 32
    s_load_dwordx4 s[44:47], s[0:1], 64
    s_and_b32 s13, s2, 7
    s_lshl_b32 s13, s13, 2
    s_lshr_b32 s3, s2, 3
    s_and_b32 s3, s3, 3
    s_add_u32 s13, s13, s3                 ; ng
    s_lshr_b32 s12, s2, 5                  ; mb
    v_lshrrev_b32 v1, 6, v0
    v_and_b32 v2, 63, v0                   ; lane
    s_nop 0
    v_readfirstlane_b32 s14, v1            ; wave
    s_mul_i32 s21, s14, 5120
    s_lshl_b32 s34, s14, 14
    s_add_u32 s34, s34, {K1_AOFF}
    s_lshl_b32 s22, s12, 8
    s_lshl_b32 s23, s14, 6
    s_add_u32 s22, s22, s23                ; row0
    v_and_b32 v3, 31, v2
    v_add_u32 v3, s22, v3
    v_lshrrev_b32 v4, 5, v2                ; h
    ; stats duty rows: mb*256 + ng*8 + wave*4 + (lane>>4)
    s_lshl_b32 s23, s12, 8
    s_lshl_b32 s35, s13, 3
    s_add_u32 s23, s23, s35
    s_lshl_b32 s35, s14, 2
    s_add_u32 s23, s23, s35
    v_lshrrev_b32 v5, 4, v2
    v_add_u32 v5, s23, v5
    v_lshlrev_b32 v7, 3, v5
    v_mul_u32_u24 v5, 1280, v5
    v_and_b32 v6, 15, v2
    v_lshl_add_u32 v5, v6, 4, v5
    s_waitcnt lgkmcnt(0)
    s_mov_b32 s16, s6
    s_mov_b32 s17, s7                      ; wqkv
    s_mov_b32 s6, s46
    s_mov_b32 s7, s47                      ; ws
    s_mov_b32 s38, s4
    s_mov_b32 s39, s5
    s_lshl_b32 s35, s12, 5
    s_add_u32 s36, s44, s35
    s_addc_u32 s37, s45, 0
    s_add_u32 s42, s6, {ST}
    s_addc_u32 s43, s7, 0
    s_cmp_ge_u32 s14, 2
    s_cbranch_scc1 L_k1_nostatld
    """)
    stats_loads(k, 8, 5, 38, 'st')
    k.label('L_k1_nostatld')
    k.vm = ['st'] * 5
    ws_srd(k, 8, 6)
    k(f"""
    v_and_b32 v28, 31, v2
    v_lshrrev_b32 v29, 1, v28
    v_and_b32 v29, 7, v29
    v_lshlrev_b32 v28, 7, v28
    v_add_u32 v28, s34, v28
    v_xor_b32 v30, v4, v29
    s_lshl_b32 s23, s14, 1                 ; 2*((s_code + w)&3)
    s_and_b32 s35, s23, 6
    v_xor_b32 v31, s35, v30
    v_lshl_add_u32 v50, v31, 4, v28
    s_add_u32 s23, s23, 2
    s_and_b32 s35, s23, 6
    v_xor_b32 v31, s35, v30
    v_lshl_add_u32 v51, v31, 4, v28
    s_add_u32 s23, s23, 2
    s_and_b32 s35, s23, 6
    v_xor_b32 v31, s35, v30
    v_lshl_add_u32 v52, v31, 4, v28
    s_add_u32 s23, s23, 2
    s_and_b32 s35, s23, 6
    v_xor_b32 v31, s35, v30
    v_lshl_add_u32 v53, v31, 4, v28
    ; A DMA source offsets: (row0 + 8j + (l>>3))*1280 + ((l&7) ^ ((4j + (l>>4))&7))*16
    v_lshrrev_b32 v28, 3, v2
    v_add_u32 v28, s22, v28
    v_mul_u32_u24 v28, 1280, v28
    v_and_b32 v29, 7, v2
    v_lshrrev_b32 v30, 4, v2
    v_xor_b32 v29, v29, v30
    v_lshl_add_u32 v30, v29, 4, v28        ; j even
    v_xor_b32 v29, 4, v29
    v_lshl_add_u32 v31, v29, 4, v28        ; j odd
    """)
    for j in range(8):
        k(f'v_add_u32 v{56+j}, {10240*j}, v{31 if j & 1 else 30}')
    k(f"""
    v_mul_u32_u24 v54, 2560, v4
    v_and_b32 v28, 15, v2
    v_lshrrev_b32 v28, 2, v28
    v_mul_u32_u24 v28, 320, v28
    v_add_u32 v54, v54, v28
    v_lshrrev_b32 v28, 4, v2
    v_and_b32 v28, 1, v28
    v_mul_u32_u24 v28, 160, v28
    v_add_u32 v54, v54, v28
    v_and_b32 v28, 3, v2
    v_lshl_add_u32 v54, v28, 3, v54
    v_add_u32 v55, 40960, v54
    v_mov_b32 v88, 0
    v_mov_b32 v89, 0
    v_mov_b32 v90, 0
    v_mov_b32 v91, 0
    v_mov_b32 v92, 0
    v_mov_b32 v93, 0x3f803f80
    s_mul_i32 s23, s14, 320
    v_add_u32 v36, s23, v2                 ; p for j=0
    s_cmp_ge_u32 s13, 12
    s_cbranch_scc1 L_k1_ffn_addr
    s_mul_i32 s23, s13, 320
    s_add_u32 s16, s16, s23
    s_addc_u32 s17, s17, 0
    s_mov_b32 s20, 245760
    """)
    for j in range(5):
        k(f"""
        v_add_u32 v37, {64*j}, v36
        v_mul_u32_u24 v38, 3277, v37
        v_lshrrev_b32 v38, 16, v38
        v_mul_u32_u24 v39, 20, v38
        v_sub_u32 v39, v37, v39
        v_mul_u32_u24 v38, 3840, v38
        v_lshl_add_u32 v38, v39, 4, v38
        v_mov_b32 v{41+2*j}, s17
        v_add_co_u32 v{40+2*j}, vcc, s16, v38
        v_addc_co_u32 v{41+2*j}, vcc, 0, v{41+2*j}, vcc
        """)
    k('s_branch L_k1_addr_done')
    k.label('L_k1_ffn_addr')
    k("""
    s_sub_u32 s28, s13, 12
    s_mul_i32 s29, s28, 5
    s_lshl_b32 s30, s28, 2
    s_add_u32 s30, s30, 15
    s_cmp_ge_u32 s28, 16
    s_cselect_b32 s29, s30, s29
    s_cselect_b32 s31, 1, 0
    s_lshl_b32 s29, s29, 5
    s_add_u32 s24, s24, s29
    s_addc_u32 s25, s25, 0
    s_add_u32 s26, s26, s29
    s_addc_u32 s27, s27, 0
    s_sub_u32 s26, s26, 160
    s_subb_u32 s27, s27, 0
    s_mov_b32 s20, 196608
    v_mov_b32 v32, s24
    v_mov_b32 v33, s25
    v_mov_b32 v34, s26
    v_mov_b32 v35, s27
    """)
    for j in range(5):
        k(f"""
        v_add_u32 v37, {64*j}, v36
        v_mul_u32_u24 v38, 3277, v37
        v_lshrrev_b32 v38, 16, v38
        v_mul_u32_u24 v39, 20, v38
        v_sub_u32 v39, v37, v39
        v_mul_u32_u24 v38, 3072, v38
        v_lshl_add_u32 v38, v39, 4, v38
        v_cmp_le_u32 vcc, 10, v39
        s_nop 1
        v_cndmask_b32 v37, v32, v34, vcc
        v_cndmask_b32 v{41+2*j}, v33, v35, vcc
        v_add_co_u32 v{40+2*j}, vcc, v37, v38
        v_addc_co_u32 v{41+2*j}, vcc, 0, v{41+2*j}, vcc
        """)
    k.label('L_k1_addr_done')
    frag_read, AR_ops, AD_ops, D_ops, PD, nfr = k1_mainloop(k, False)
    for f in D_ops(0) + AD_ops(0) + D_ops(1) + AD_ops(1) + D_ops(2):
        f()
    k(f"""
    s_cmp_lg_u32 s14, 3
    s_cbranch_scc1 L_k1_nozero
    v_lshlrev_b32 v28, 4, v2
    v_add_u32 v28, {K1_CS}, v28
    v_mov_b32 v32, 0
    v_mov_b32 v33, 0
    v_mov_b32 v34, 0
    v_mov_b32 v35, 0
    ds_write_b128 v28, v[32:35]
    s_waitcnt lgkmcnt(0)
    """)
    k.label('L_k1_nozero')
    k("""
    s_cmp_ge_u32 s14, 2
    s_cbranch_scc1 L_k1_nostat
    """)
    saved = list(k.vm)
    k.wait_vm('st')
    stats_compute(k, 8, list(range(96, 136)), 28)
    k(f"""
    s_mov_b32 exec_lo, 0x00010001
    s_mov_b32 exec_hi, 0x00010001
    global_store_dwordx2 v7, v[28:29], s[42:43] sc0 sc1
    s_mov_b64 exec, -1
    """)
    k.label('L_k1_nostat')
    k.vm = [x for x in saved if x != 'st']
    for sc in range(4):
        k(f"""
        s_add_u32 s23, s14, {sc}
        s_and_b32 s23, s23, 3
        s_mul_i32 s23, s23, 5120
        v_add_u32 v{28+sc}, s23, v54
        v_add_u32 v{32+sc}, s23, v55
        """)
    k("""
    s_cmp_ge_u32 s13, 8
    s_cbranch_scc0 L_k1_main_n
    s_cmp_lt_u32 s13, 12
    s_cbranch_scc1 L_k1_main_v
    """)
    vm0 = list(k.vm)
    k.label('L_k1_main_n')
    k1_loop(k, False)
    k1_get_stats(k, 0)
    k(f"""
    v_lshlrev_b32 v5, 3, v3
    global_load_dwordx2 v[8:9], v5, s[42:43] sc0 sc1
    global_load_dwordx2 v[10:11], v5, s[42:43] offset:256 sc0 sc1
    v_lshlrev_b32 v5, 4, v4                ; h*16 bytes
    v_add_u32 v5, {K1_CS}, v5
    """)
    for t in range(5):
        for q in range(4):
            d = 40 + (t * 4 + q) * 4 if t < 3 else 64 + ((t - 3) * 4 + q) * 4 - 0
            pass
    def cs(t, q):
        i = t * 4 + q
        if i < 12: return 40 + i * 4
        i -= 12
        if i < 7: return 12 + i * 4
        return 88
    for t in range(5):
        for q in range(4):
            r = (q >> 1) * 16 + (q & 1) * 8
            k.lds(f'ds_read_b128 v[{cs(t,q)}:{cs(t,q)+3}], v5 offset:{(t*32 + r)*4}', 'cs')
    k('s_waitcnt vmcnt(0)')
    k.wait_lg_all()
    for t in range(5):
        for sub in range(2):
            a = acc(t, sub)
            for q in range(4):
                for i in range(4):
                    k(f'v_fma_f32 v{a+4*q+i}, -v{8+2*sub}, v{cs(t,q)+i}, v{a+4*q+i}')
                    k(f'v_mul_f32 v{a+4*q+i}, v{a+4*q+i}, v{9+2*sub}')
    k("""
    s_cmp_ge_u32 s13, 12
    s_cbranch_scc1 L_k1_epi_ffn
    """)
    k(f"""
    s_mov_b32 s28, {QF}
    s_mov_b32 s29, {KF}
    s_cmp_ge_u32 s13, 4
    s_cselect_b32 s28, s29, s28
    s_and_b32 s29, s13, 3
    s_mul_i32 s29, s29, {8*98304}
    s_add_u32 s28, s28, s29
    v_lshrrev_b32 v5, 4, v3
    v_mul_u32_u24 v5, 768, v5
    v_and_b32 v6, 15, v3
    v_lshl_add_u32 v5, v6, 4, v5
    v_lshl_add_u32 v6, v4, 3, v5
    v_mul_u32_u24 v7, 248, v4
    v_add_u32 v7, v7, v5
    v_mul_u32_u24 v16, {98304-512}, v4
    v_add_u32 v16, v16, v5
    """)
    def off(G):
        return (G // 5) * 98304 + ((G % 5) >> 1) * 256 + ((G % 5) & 1) * 8
    cnt = 0
    for t in range(5):
        for sub in range(2):
            a = acc(t, sub)
            for q in range(4):
                G0 = (q >> 1) * 20 + 4 * t + 2 * (q & 1)
                df = off(G0 + 1) - off(G0)
                va = {8: 6, 248: 7, 98304 - 512: 16}[df]
                d = 8 + (cnt % 4) * 2
                cnt += 1
                k(f'v_cvt_pk_bf16_f32 v{d}, v{a+4*q}, v{a+4*q+1}')
                k(f'v_cvt_pk_bf16_f32 v{d+1}, v{a+4*q+2}, v{a+4*q+3}')
                k(f's_add_u32 s29, s28, {off(G0)}')
                k.vmem(f'buffer_store_dwordx2 v[{d}:{d+1}], v{va}, s[8:11], s29 offen offset:{sub*1536}')
    k("""
    v_add_u32 v5, s22, v2
    v_lshrrev_b32 v6, 4, v5
    v_mul_u32_u24 v6, 768, v6
    v_and_b32 v5, 15, v5
    v_lshl_add_u32 v5, v5, 4, v6
    v_mov_b32 v18, 0
    v_mov_b32 v19, 0
    """)
    for j in range(8):
        k(f's_add_u32 s29, s28, {j*98304}')
        k.vmem(f'buffer_store_dwordx2 v[18:19], v5, s[8:11], s29 offen offset:520')
    k('s_branch L_k1_end')
    k.label('L_k1_epi_ffn')
    k(f"""
    s_lshl_b32 s28, s29, 4
    s_add_u32 s28, s28, {HF}
    s_add_u32 s30, s28, 98304
    v_lshrrev_b32 v5, 4, v3
    v_mul_u32_u24 v5, 49152, v5
    v_and_b32 v6, 15, v3
    v_lshl_add_u32 v5, v6, 4, v5
    v_lshl_add_u32 v5, v4, 8, v5
    s_mov_b32 s33, {f32hex(-LOG2E)}
    """)
    cnt = 0
    for t in range(5):
        if t == 0:
            k("""
            s_cmp_lg_u32 s31, 0
            s_cbranch_scc1 L_k1_ffn_skip0
            """)
        for sub in range(2):
            a = acc(t, sub)
            d = 16 + (cnt % 2) * 4
            cnt += 1
            for i in range(8):
                k(f'v_mul_f32 v{24+i}, s33, v{a+i}')
            for i in range(8):
                k(f'v_exp_f32 v{24+i}, v{24+i}')
            for i in range(8):
                k(f'v_mul_f32 v{a+i}, v{a+i}, v{a+8+i}')
            for i in range(8):
                k(f'v_add_f32 v{24+i}, 1.0, v{24+i}')
            for i in range(8):
                k(f'v_rcp_f32 v{24+i}, v{24+i}')
            k('s_nop 0')
            for i in range(8):
                k(f'v_mul_f32 v{a+i}, v{a+i}, v{24+i}')
            for pr in range(4):
                k(f'v_cvt_pk_bf16_f32 v{d+pr}, v{a+2*pr}, v{a+2*pr+1}')
            k('s_nop 1')
            k(f'v_permlane32_swap_b32 v{d}, v{d+2}')
            k(f'v_permlane32_swap_b32 v{d+1}, v{d+3}')
            so = 's30' if sub else 's28'
            k.vmem(f'buffer_store_dwordx4 v[{d}:{d+3}], v5, s[8:11], {so} offen offset:{t*512}')
        if t == 0:
            k.label('L_k1_ffn_skip0')
    k('s_branch L_k1_end')
    k.label('L_k1_main_v')
    k.vm = list(vm0); k.lg = []
    k1_loop(k, True)
    k1_get_stats(k, 1)
    k(f"""
    s_lshl_b32 s29, s22, 3
    v_lshlrev_b32 v5, 5, v4
    v_add_u32 v5, s29, v5
    v_and_b32 v6, 31, v2
    v_lshlrev_b32 v6, 2, v6
    v_add_u32 v6, {K1_CS}, v6
    """)
    for sub in range(2):
        for q in range(4):
            d = 24 + (sub * 4 + q) * 8
            k(f'global_load_dwordx4 v[{d}:{d+3}], v5, s[42:43] offset:{sub*256 + q*64} sc0 sc1')
            k(f'global_load_dwordx4 v[{d+4}:{d+7}], v5, s[42:43] offset:{sub*256 + q*64 + 16} sc0 sc1')
    for t in range(5):
        k(f'ds_read_b32 v{88+t}, v6 offset:{t*128}')
    k('s_waitcnt vmcnt(0) lgkmcnt(0)')
    for t in range(5):
        for sub in range(2):
            a = acc(t, sub)
            for q in range(4):
                for i in range(4):
                    st = 24 + (sub * 4 + q) * 8 + 2 * i
                    k(f'v_fma_f32 v{a+4*q+i}, -v{st}, v{88+t}, v{a+4*q+i}')
                    k(f'v_mul_f32 v{a+4*q+i}, v{a+4*q+i}, v{st+1}')
    k(f"""
    s_sub_u32 s28, s13, 8
    s_mul_i32 s28, s28, {8*81920}
    s_lshr_b32 s29, s22, 5
    s_mul_i32 s29, s29, 1280
    s_add_u32 s28, s28, s29
    s_add_u32 s28, s28, {VF}
    v_and_b32 v5, 15, v2
    v_lshrrev_b32 v6, 4, v2
    v_and_b32 v6, 1, v6
    v_mul_u32_u24 v6, 80, v6
    v_add_u32 v5, v5, v6
    v_mov_b32 v20, 256
    v_mov_b32 v21, 64
    """)
    cnt = 0
    for t in range(5):
        k(f"""
        v_add_u32 v6, {16*t}, v5
        v_mul_u32_u24 v7, 3277, v6
        v_lshrrev_b32 v7, 16, v7
        v_mul_u32_u24 v16, 20, v7
        v_sub_u32 v6, v6, v16
        v_mul_u32_u24 v7, 81920, v7
        v_lshlrev_b32 v16, 4, v6
        v_add_u32 v17, 768, v16
        v_cmp_gt_u32 vcc, 16, v6
        s_nop 1
        v_cndmask_b32 v16, v17, v16, vcc
        v_cndmask_b32 v17, v21, v20, vcc
        v_add_u32 v7, v7, v16
        v_mad_u32_u24 v18, v17, v4, v7
        v_lshl_add_u32 v19, v17, 1, v18
        """)
        for sub in range(2):
            a = acc(t, sub)
            for q in range(4):
                d = 8 + (cnt % 4) * 2
                cnt += 1
                k(f'v_cvt_pk_bf16_f32 v{d}, v{a+4*q}, v{a+4*q+1}')
                k(f'v_cvt_pk_bf16_f32 v{d+1}, v{a+4*q+2}, v{a+4*q+3}')
                k.vmem(f'buffer_store_dwordx2 v[{d}:{d+1}], v{18 + (q&1)}, s[8:11], s28 offen offset:{sub*1280 + (q>>1)*8}')
    k.label('L_k1_end')
    k.stamp(5)
    k('s_waitcnt vmcnt(0)')
    k.stamp(6)
    if 'ts' in EXP: k('s_memrealtime s[86:87]')
    k.stamp_flush(9, 6)
    k.label('L_k1_done')
    k('s_endpgm')
    return k.text(), kernel_desc('gemm1_kernel', 256 + 64, 100, 256)

K2_VOFF = 24576
K2_LDS = K2_VOFF + 15360 + 1024
def gen_k2():
    k = K()
    k.raw(kernel_header('attn_kernel'))
    S0 = 64
    def S(a, kt):
        return S0 + (a * 18 + kt) * 4
    KF0 = 32
    QR = 48
    VF0 = 208
    OA = 240
    k(f'''
    s_cmp_ge_u32 s2, 512
    s_cbranch_scc1 L_k2_relay
    ''')
    k.stamp(0)
    if 'ts' in EXP: k('s_memrealtime s[84:85]')
    k(f'''
    s_load_dwordx2 s[6:7], s[0:1], 72
    s_and_b32 s12, s2, 7
    s_lshl_b32 s12, s12, 2
    s_lshr_b32 s13, s2, 7
    s_add_u32 s12, s12, s13                ; head
    s_lshr_b32 s13, s2, 3
    s_and_b32 s13, s13, 15
    s_lshl_b32 s13, s13, 7                 ; q0
    v_lshrrev_b32 v1, 6, v0
    v_and_b32 v2, 63, v0
    s_nop 0
    v_readfirstlane_b32 s14, v1            ; wave
    v_lshlrev_b32 v3, 4, v2                ; lane*16
    s_lshr_b32 s15, s13, 4
    s_mul_i32 s16, s14, 6
    s_add_u32 s15, s15, s16
    s_sub_u32 s15, s15, 16
    s_mul_i32 s15, s15, 768
    s_mul_i32 s16, s12, 98304
    s_add_u32 s15, s15, s16
    s_add_u32 s15, s15, {KF}
    s_mul_i32 s17, s14, 6144               ; LDS dest of this wave
    s_lshr_b32 s20, s13, 5
    s_sub_u32 s20, s20, 8
    s_mul_i32 s20, s20, 1280
    s_mul_i32 s21, s12, 81920
    s_add_u32 s20, s20, s21
    s_lshl_b32 s21, s14, 12
    s_add_u32 s20, s20, s21
    s_add_u32 s20, s20, {VF}
    s_add_u32 s21, s21, {K2_VOFF}
    v_mov_b32 v{QR}, 0
    v_mov_b32 v{QR+1}, 0
    v_mov_b32 v{QR+2}, 0
    v_mov_b32 v{QR+3}, 0
    v_mov_b32 v{QR+4}, 0
    v_mov_b32 v{QR+5}, 0
    v_mov_b32 v{QR+6}, 0
    v_mov_b32 v{QR+7}, 0
    s_waitcnt lgkmcnt(0)
    s_add_u32 s18, s6, s15
    s_addc_u32 s19, s7, 0
    s_add_u32 s22, s6, s20
    s_addc_u32 s23, s7, 0
    s_mov_b32 m0, s21
    s_nop 0
    ''')
    for j in range(3):
        k.vmem(f'global_load_lds_dwordx4 v3, s[22:23] offset:{j*1024}', 'dma')
    lb = k.newlabel('L_k2_v3')
    k('s_cmp_eq_u32 s14, 3')
    k(f's_cbranch_scc1 {lb}')
    k(f'global_load_lds_dwordx4 v3, s[22:23] offset:3072')
    k.label(lb)
    k('s_mov_b32 exec_hi, 0xffff')
    for j in range(6):
        k(f's_add_u32 m0, s17, {j*1024}')
        k('s_nop 0')
        k.vmem(f'global_load_lds_dwordx4 v3, s[18:19]', 'dma')
        k('s_add_u32 s18, s18, 768')
        k('s_addc_u32 s19, s19, 0')
    k(f'''
    s_lshl_b32 s24, s14, 5                 ; 32w
    s_add_u32 s25, s13, s24                ; q0 + 32w
    s_lshr_b32 s26, s25, 4
    s_mul_i32 s26, s26, 768
    s_mul_i32 s27, s12, 98304
    s_add_u32 s26, s26, s27
    s_add_u32 s26, s26, {QF}
    s_add_u32 s18, s6, s26
    s_addc_u32 s19, s7, 0
    ''')
    k.vmem(f'global_load_dwordx4 v[{QR}:{QR+3}], v3, s[18:19]', 'q')
    k.vmem(f'global_load_dwordx4 v[{QR+4}:{QR+7}], v3, s[18:19] offset:768', 'q')
    k('s_mov_b64 exec, -1')
    k(f'''
    v_and_b32 v5, 15, v2                   ; l&15
    v_lshrrev_b32 v6, 4, v2                ; g
    v_lshlrev_b32 v7, 10, v6
    v_lshl_add_u32 v7, v5, 4, v7
    v_add_u32 v7, s17, v7
    v_mov_b32 v12, 0
    v_mov_b32 v13, 0
    v_mov_b32 v14, 0
    v_mov_b32 v15, 0
    ds_write_b128 v7, v[12:15] offset:768
    s_mov_b32 exec_hi, 0
    ds_write_b128 v7, v[12:15] offset:{4096+768}
    s_mov_b64 exec, -1
    s_lshl_b32 s26, s14, 11                ; 2w*1024
    v_add_u32 v8, s26, v3
    s_mul_i32 s26, s14, 1280
    s_add_u32 s26, s26, {K2_VOFF}
    v_add_u32 v9, s26, v3
    v_and_b32 v10, 3, v5
    v_lshlrev_b32 v10, 4, v10
    v_lshl_add_u32 v10, v6, 6, v10
    v_add_u32 v10, s26, v10
    s_sub_u32 s25, s25, 256
    v_lshlrev_b32 v11, 2, v6
    v_sub_u32 v11, v5, v11                 ; (l&15) - 4g
    v_cmp_le_i32 s[32:33], 0, v11
    v_cmp_le_i32 s[34:35], 1, v11
    v_cmp_le_i32 s[36:37], 2, v11
    v_cmp_le_i32 s[38:39], 3, v11
    v_mov_b32 v11, 0xff800000              ; -inf
    s_mov_b32 s40, {f32hex(LOG2E * 20 ** -0.5)}
    s_waitcnt lgkmcnt(0)
    ''')
    k.wait_vm_all()
    k('s_barrier')
    k.stamp(1)
    PD = 3
    def kread(kt):
        d = KF0 + (kt % 4) * 4
        k.lds(f'ds_read_b128 v[{d}:{d+3}], v8 offset:{kt*1024}', ('k', kt))
    for kt in range(PD):
        kread(kt)
    for kt in range(18):
        if kt + PD < 18:
            kread(kt + PD)
        k.wait_lg(('k', kt))
        d = KF0 + (kt % 4) * 4
        for a in range(2):
            if (a == 0 and kt == 17) or (a == 1 and kt == 0):
                continue
            s = S(a, kt)
            k(f'v_mfma_f32_16x16x32_bf16 v[{s}:{s+3}], v[{d}:{d+3}], v[{QR+4*a}:{QR+4*a+3}], 0')
    def vread(p):
        d = VF0 + (p % 4) * 8
        k.lds(f'ds_read_b128 v[{d}:{d+3}], v9 offset:{p*1280}', ('v', p))
        k.lds(f'ds_read_b128 v[{d+4}:{d+7}], v10 offset:{p*1280 + 1024}', ('v', p))
    for p in range(3):
        vread(p)
    k('s_nop 7')
    k('s_nop 1')
    k.stamp(2)
    for p in range(8):
        lb = k.newlabel('L_k2_v')
        k(f's_cmp_ge_i32 s25, {-32*p}')
        k(f's_cbranch_scc1 {lb}')
        for a in range(2):
            for kt in (2 * p, 2 * p + 1):
                if (a == 0 and kt == 17) or (a == 1 and kt == 0):
                    continue
                for r in range(4):
                    k(f'v_mov_b32 v{S(a,kt)+r}, v11')
        k.label(lb)
    for a in range(2):
        for r in range(4):
            s = S(a, a) + r
            k(f'v_cndmask_b32 v{s}, v{s}, v11, s[{32+2*r}:{33+2*r}]')
            s = S(a, a + 16) + r
            k(f'v_cndmask_b32 v{s}, v11, v{s}, s[{32+2*r}:{33+2*r}]')
    for a in range(2):
        regs = [S(a, kt) + r for kt in range(a, a + 17) for r in range(4)]
        m = 12 + a
        k(f'v_max3_f32 v{m}, v{regs[0]}, v{regs[1]}, v{regs[2]}')
        i = 3
        while i < len(regs):
            if i + 1 < len(regs):
                k(f'v_max3_f32 v{m}, v{m}, v{regs[i]}, v{regs[i+1]}')
                i += 2
            else:
                k(f'v_max_f32 v{m}, v{m}, v{regs[i]}')
                i += 1
    def xlane(op, r):
        k(f'''
        v_mov_b32 v16, v{r}
        s_nop 1
        v_permlane32_swap_b32 v16, v{r}
        s_nop 1
        {op} v{r}, v{r}, v16
        v_mov_b32 v16, v{r}
        s_nop 1
        v_permlane16_swap_b32 v16, v{r}
        s_nop 1
        {op} v{r}, v{r}, v16
        ''')
    for a in range(2):
        xlane('v_max_f32', 12 + a)
        k(f'v_mul_f32 v{12+a}, s40, v{12+a}')
    k.stamp(3)
    for a in range(2):
        k(f'v_mov_b32 v{14+a}, 0')
        for kt in range(a, a + 17):
            s = S(a, kt)
            for r in range(4):
                k(f'v_fma_f32 v{s+r}, v{s+r}, s40, -v{12+a}')
            for r in range(4):
                k(f'v_exp_f32 v{s+r}, v{s+r}')
            k('s_nop 0')
            k(f'v_add_f32 v17, v{s}, v{s+1}')
            k(f'v_add_f32 v18, v{s+2}, v{s+3}')
            k(f'v_add_f32 v17, v17, v18')
            k(f'v_add_f32 v{14+a}, v{14+a}, v17')
    for a in range(2):
        for p in range(9):
            s0, s1 = S(a, 2 * p), S(a, 2 * p + 1)
            if a == 1 and p == 0:
                k(f'v_mov_b32 v{s0}, 0')
                k(f'v_mov_b32 v{s0+1}, 0')
            else:
                k(f'v_cvt_pk_bf16_f32 v{s0}, v{s0}, v{s0+1}')
                k(f'v_cvt_pk_bf16_f32 v{s0+1}, v{s0+2}, v{s0+3}')
            if a == 0 and p == 8:
                k(f'v_mov_b32 v{s0+2}, 0')
                k(f'v_mov_b32 v{s0+3}, 0')
            else:
                k(f'v_cvt_pk_bf16_f32 v{s0+2}, v{s1}, v{s1+1}')
                k(f'v_cvt_pk_bf16_f32 v{s0+3}, v{s1+2}, v{s1+3}')
    for a in range(2):
        xlane('v_add_f32', 14 + a)
        k(f'v_rcp_f32 v{14+a}, v{14+a}')
    k.stamp(4)
    for p in range(9):
        if p + 3 < 9:
            vread(p + 3)
        k.wait_lg(('v', p))
        d = VF0 + (p % 4) * 8
        for a in range(2):
            for dt in range(2):
                o = OA + (a * 2 + dt) * 4
                cin = '0' if p == 0 else f'v[{o}:{o+3}]'
                s0 = S(a, 2 * p)
                k(f'v_mfma_f32_16x16x32_bf16 v[{o}:{o+3}], v[{d+4*dt}:{d+4*dt+3}], v[{s0}:{s0+3}], {cin}')
    k(f'''
    s_add_u32 s26, s13, s24
    s_lshr_b32 s26, s26, 4
    s_mul_i32 s26, s26, 20480
    s_add_u32 s26, s26, {OF}
    s_add_u32 s18, s6, s26
    s_addc_u32 s19, s7, 0
    s_mul_i32 s27, s12, 20
    v_lshl_add_u32 v20, v6, 2, s27
    v_add_u32 v22, 16, v20
    v_lshrrev_b32 v21, 3, v20
    v_lshlrev_b32 v21, 8, v21
    v_and_b32 v20, 4, v20
    v_lshl_add_u32 v21, v20, 1, v21
    v_lshl_add_u32 v20, v5, 4, v21
    v_lshrrev_b32 v21, 3, v22
    v_lshlrev_b32 v21, 8, v21
    v_and_b32 v22, 4, v22
    v_lshl_add_u32 v21, v22, 1, v21
    v_lshl_add_u32 v21, v5, 4, v21
    v_add_u32 v22, 20480, v20
    v_add_u32 v23, 20480, v21
    s_nop 3
    ''')
    for a in range(2):
        for dt in range(2):
            o = OA + (a * 2 + dt) * 4
            for r in range(4):
                k(f'v_mul_f32 v{o+r}, v{o+r}, v{14+a}')
            k(f'v_cvt_pk_bf16_f32 v{o}, v{o}, v{o+1}')
            k(f'v_cvt_pk_bf16_f32 v{o+1}, v{o+2}, v{o+3}')
    for a in range(2):
        o = OA + (a * 2) * 4
        k.vmem(f'global_store_dwordx2 v{20+2*a}, v[{o}:{o+1}], s[18:19]')
    k('s_mov_b64 exec, 0xffff')
    for a in range(2):
        o = OA + (a * 2 + 1) * 4
        k.vmem(f'global_store_dwordx2 v{21+2*a}, v[{o}:{o+1}], s[18:19]')
    k('s_mov_b64 exec, -1')
    k.stamp(5)
    k('s_waitcnt vmcnt(0)')
    k.stamp(6)
    if 'ts' in EXP: k('s_memrealtime s[86:87]')
    k.stamp_flush(9, 6, base=0x3200000)
    k.label('L_k2_done')
    k('s_endpgm')
    k.label('L_k2_relay')
    k(f"""
    s_cmp_ge_u32 s2, 682
    s_cbranch_scc1 L_k2_done
    s_load_dwordx2 s[8:9], s[0:1], 16      ; wo
    s_load_dwordx2 s[10:11], s[0:1], 48    ; w_down
    s_load_dwordx2 s[6:7], s[0:1], 72      ; ws
    s_sub_u32 s12, s2, 512
    s_mul_i32 s13, s12, 13108
    s_lshr_b32 s13, s13, 16                ; kb = u // 5
    s_mul_i32 s14, s13, 5
    s_sub_u32 s14, s12, s14                ; nb
    v_lshrrev_b32 v1, 6, v0
    v_and_b32 v2, 63, v0
    s_nop 0
    v_readfirstlane_b32 s15, v1            ; wave
    v_lshrrev_b32 v3, 4, v2
    v_mul_u32_u24 v3, 1280, v3
    v_and_b32 v4, 15, v2
    v_lshl_add_u32 v3, v4, 4, v3
    s_waitcnt lgkmcnt(0)
    s_cmp_ge_u32 s13, 10
    s_cselect_b32 s16, s10, s8
    s_cselect_b32 s17, s11, s9
    s_cselect_b32 s18, 10, 0
    s_sub_u32 s18, s13, s18                ; 64-k block inside its matrix
    s_lshl_b32 s18, s18, 6
    s_lshl_b32 s19, s15, 4
    s_add_u32 s18, s18, s19                ; first row of this wave
    s_mul_i32 s18, s18, 1280
    s_lshl_b32 s19, s14, 8
    s_add_u32 s18, s18, s19
    s_add_u32 s16, s16, s18
    s_addc_u32 s17, s17, 0
    s_lshl_b32 s20, s15, 12                ; LDS dest: wave*16 rows*256
    """)
    for j in range(4):
        k(f's_add_u32 m0, s20, {j*1024}')
        k('s_nop 0')
        k(f'global_load_lds_dwordx4 v3, s[16:17]')
        k('s_add_u32 s16, s16, 5120')
        k('s_addc_u32 s17, s17, 0')
    k(f"""
    v_lshrrev_b32 v5, 4, v2                ; g
    v_lshrrev_b32 v6, 2, v4                ; i = (l&15)>>2
    v_lshl_add_u32 v6, v5, 3, v6           ; row = 8g + i
    v_lshlrev_b32 v6, 8, v6
    v_and_b32 v7, 3, v2
    v_lshl_add_u32 v6, v7, 3, v6
    s_lshl_b32 s21, s15, 6
    v_add_u32 v6, s21, v6                  ; + 2w*32 bytes
    s_waitcnt vmcnt(0)
    s_barrier
    """)
    for nt in range(2):
        for ks in range(2):
            d = 8 + (nt * 2 + ks) * 4
            k(f'ds_read_b64_tr_b16 v[{d}:{d+1}], v6 offset:{ks*32*256 + nt*32}')
            k(f'ds_read_b64_tr_b16 v[{d+2}:{d+3}], v6 offset:{ks*32*256 + 4*256 + nt*32}')
    k(f"""
    s_lshl_b32 s22, s14, 3
    s_lshl_b32 s23, s15, 1
    s_add_u32 s22, s22, s23
    s_mul_i32 s22, s22, 68
    s_lshl_b32 s23, s13, 1
    s_add_u32 s22, s22, s23
    s_lshl_b32 s22, s22, 10
    s_add_u32 s22, s22, {W3F}
    s_add_u32 s16, s6, s22
    s_addc_u32 s17, s7, 0
    v_lshlrev_b32 v7, 4, v2
    v_add_u32 v3, {68*1024}, v7
    s_waitcnt lgkmcnt(0)
    """)
    for nt in range(2):
        for ks in range(2):
            d = 8 + (nt * 2 + ks) * 4
            k(f'global_store_dwordx4 v{3 if nt else 7}, v[{d}:{d+3}], s[16:17] offset:{ks*1024}')
    k('s_waitcnt vmcnt(0)')
    k('s_endpgm')
    return k.text(), kernel_desc('attn_kernel', 256, 100, 256)

K3_NS = 4
K3_PSTR = 336
K3_LDS = 4 * 64 * K3_PSTR
K3_AC0 = 16; K3_AV = 130; K3_WV = 120
def k3_body(k, nblk):
    AC0 = K3_AC0; AV = K3_AV; WV = K3_WV
    NS = K3_NS
    def xa(b, mt, s):
        return f'a[{(b % NS) * 32 + (mt * 2 + s) * 4}:{(b % NS) * 32 + (mt * 2 + s) * 4 + 3}]'
    def wf(b, s, t):
        i = (b % NS) * 40 + (s * 5 + t) * 4
        if i < 128:
            return f'a[{128 + i}:{128 + i + 3}]'
        return f'v[{136 + i - 128}:{136 + i - 128 + 3}]'
    def ops(b):
        o = []
        for s in range(2):
            for t in range(5):
                def f(s=s, t=t):
                    k.vmem(f'global_load_dwordx4 {wf(b, s, t)}, v{WV+t}, s[18:19] offset:{s*1024}', ('L', b, s))
                o.append(f)
            for mt in range(4):
                def f(mt=mt, s=s):
                    k.vmem(f'global_load_dwordx4 {xa(b, mt, s)}, v{AV+mt}, s[16:17] offset:{s*1024}', ('L', b, s))
                o.append(f)
        def f():
            k('s_add_u32 s16, s16, 2048')
            k('s_addc_u32 s17, s17, 0')
            k('s_add_u32 s18, s18, 2048')
            k('s_addc_u32 s19, s19, 0')
        o.append(f)
        return o
    for b0 in range(NS - 1):
        for f in ops(b0):
            f()
    k.stamp(1)
    for b in range(nblk):
        if b == 1: k.stamp(2)
        if b == 5: k.stamp(3)
        pend = ops(b + NS - 1) if b + NS - 1 < nblk else []
        for s in range(2):
            k.wait_vm(('L', b, s))
            for t in range(5):
                for mt in range(4):
                    a = AC0 + (mt * 5 + t) * 4
                    cin = '0' if (b == 0 and s == 0) else f'v[{a}:{a+3}]'
                    k(f'v_mfma_f32_16x16x32_bf16 v[{a}:{a+3}], {wf(b, s, t)}, {xa(b, mt, s)}, {cin}')
                    if mt % 2 == 1 and pend:
                        pend.pop(0)()
        while pend:
            pend.pop(0)()
    k('s_nop 7')
    k('s_nop 1')

def gen_k3():
    k = K()
    k.raw(kernel_header('gemm2_kernel'))
    AC0 = K3_AC0; AV = K3_AV; WV = K3_WV
    k(f"""
    s_cmp_ge_u32 s2, 256
    s_cbranch_scc1 L_k3_done
    """)
    k.stamp(0)
    if 'ts' in EXP: k('s_memrealtime s[84:85]')
    k(f"""
    s_load_dwordx2 s[4:5], s[0:1], 0       ; x
    s_load_dwordx2 s[8:9], s[0:1], 16      ; wo
    s_load_dwordx2 s[10:11], s[0:1], 48    ; w_down
    s_load_dwordx2 s[24:25], s[0:1], 56    ; out
    s_load_dwordx2 s[6:7], s[0:1], 72      ; ws
    """)
    xn = 1
    for cand in (1, 2, 4, 8):
        if f'xn{cand}' in EXP: xn = cand
    xm = 8 // xn
    lm = {1:0,2:1,4:2,8:3}
    k(f"""
    s_and_b32 s3, s2, 7
    s_lshr_b32 s15, s2, 3
    s_and_b32 s12, s3, {xm-1}
    s_lshl_b32 s12, s12, {5 - lm[xm]}
    s_and_b32 s13, s15, {32//xm - 1}
    s_add_u32 s12, s12, s13                ; m tile (0..31)
    s_lshr_b32 s13, s3, {lm[xm]}
    s_lshl_b32 s13, s13, {3 - lm[xn]}
    s_lshr_b32 s15, s15, {5 - lm[xm]}
    s_add_u32 s13, s13, s15                ; n tile (0..7)
    s_mul_i32 s13, s13, 160                ; n0*2 bytes
    v_lshrrev_b32 v1, 6, v0
    v_and_b32 v2, 63, v0
    s_nop 0
    v_readfirstlane_b32 s14, v1            ; wave
    v_and_b32 v3, 15, v2                   ; l&15
    v_lshrrev_b32 v4, 4, v2                ; g
    """)
    k("""
    v_lshlrev_b32 v5, 4, v2                ; lane*16
    v_mov_b32 v120, v5
    v_add_u32 v121, 69632, v5
    v_add_u32 v122, 139264, v5
    v_add_u32 v123, 208896, v5
    v_add_u32 v124, 278528, v5
    s_waitcnt lgkmcnt(0)
    s_cmp_lg_u32 s14, 0
    s_cbranch_scc1 L_k3_ffn
    """)
    k(f"""
    s_mul_i32 s22, s12, {4*20480}
    s_add_u32 s22, s22, {OF}
    s_add_u32 s16, s6, s22
    s_addc_u32 s17, s7, 0
    s_mul_i32 s22, s13, 2176
    s_add_u32 s22, s22, {W3F}
    s_add_u32 s18, s6, s22
    s_addc_u32 s19, s7, 0
    v_mov_b32 v{AV}, v5
    v_add_u32 v{AV+1}, 20480, v5
    v_add_u32 v{AV+2}, 40960, v5
    v_add_u32 v{AV+3}, 61440, v5
    """)
    k3_body(k, 10)
    k('s_branch L_k3_red')
    k.label('L_k3_ffn')
    k.vm = []; k.lg = []
    k(f"""
    s_sub_u32 s15, s14, 1                  ; third
    s_lshl_b32 s22, s15, 14
    s_mul_i32 s23, s12, {4*49152}
    s_add_u32 s22, s22, s23
    s_add_u32 s22, s22, {HF}
    s_add_u32 s16, s6, s22
    s_addc_u32 s17, s7, 0
    s_mul_i32 s22, s13, 2176
    s_lshl_b32 s23, s15, 14
    s_add_u32 s22, s22, s23
    s_add_u32 s22, s22, {W3F + 20*1024}
    s_add_u32 s18, s6, s22
    s_addc_u32 s19, s7, 0
    v_mov_b32 v{AV}, v5
    v_add_u32 v{AV+1}, 49152, v5
    v_add_u32 v{AV+2}, 98304, v5
    v_add_u32 v{AV+3}, 147456, v5
    """)
    k3_body(k, 8)
    k.label('L_k3_red')
    k.stamp(4)
    k.vm = []; k.lg = []
    PW = 64 * K3_PSTR
    k('s_lshl_b32 s12, s12, 6                 ; row0')
    for r in range(3):
        k(f"""
        v_add_u32 v6, {256*r}, v0
        v_mul_u32_u24 v7, 6554, v6
        v_lshrrev_b32 v7, 16, v7           ; m
        v_mul_u32_u24 v8, 10, v7
        v_sub_u32 v8, v6, v8               ; c
        v_add_u32 v9, s12, v7
        v_mul_u32_u24 v9, 1280, v9
        v_lshl_add_u32 v9, v8, 4, v9
        v_add_u32 v{96+r}, s13, v9
        v_mul_u32_u24 v9, {K3_PSTR}, v7
        v_lshl_add_u32 v{100+r}, v8, 5, v9
        v_add_u32 v{104+r}, {2*PW}, v{100+r}
        """)
    k('v_cmp_gt_u32 vcc, 128, v0')
    k('s_nop 3')
    k('s_mov_b64 s[26:27], vcc')
    for r in range(2):
        k.vmem(f'global_load_dwordx4 v[{108+4*r}:{111+4*r}], v{96+r}, s[4:5]', 'x')
    k('s_mov_b64 exec, s[26:27]')
    k('s_cbranch_execz L_k3_nox')
    k.vmem(f'global_load_dwordx4 v[116:119], v98, s[4:5]', 'x')
    k.label('L_k3_nox')
    k('s_mov_b64 exec, -1')
    k('s_barrier')
    k(f"""
    s_mul_i32 s22, s14, {PW}
    v_mul_u32_u24 v7, {K3_PSTR}, v3
    v_lshl_add_u32 v7, v4, 4, v7
    v_add_u32 v7, s22, v7
    """)
    for mt in range(4):
        for t in range(5):
            a = AC0 + (mt * 5 + t) * 4
            k.lds(f'ds_write_b128 v7, v[{a}:{a+3}] offset:{mt*16*K3_PSTR + t*64}')
    k.wait_lg_all()
    k('s_barrier')
    k.stamp(5)
    for r in range(3):
        for w in range(4):
            for hf in range(2):
                d = 120 + r * 32 + (w * 2 + hf) * 4
                k.lds(f'ds_read_b128 v[{d}:{d+3}], v{(100 if w < 2 else 104) + r} offset:{(w&1)*PW + hf*16}', ('r', r))
    k.wait_vm_all()
    for r in range(3):
        k.wait_lg(('r', r))
        p0 = 120 + r * 32
        for e in range(8):
            k(f'v_add_f32 v{p0+8+e}, v{p0+8+e}, v{p0+16+e}')
            k(f'v_add_f32 v{p0+8+e}, v{p0+8+e}, v{p0+24+e}')
        for h in range(4):
            a0, a1 = p0 + 2 * h, p0 + 2 * h + 1
            f0, f1 = a0 + 8, a1 + 8
            xr = 108 + 4 * r + h
            k(f"""
            v_cvt_pk_bf16_f32 v8, v{a0}, v{a1}
            v_cvt_pk_bf16_f32 v9, v{f0}, v{f1}
            v_lshlrev_b32 v10, 16, v8
            v_and_b32 v11, 0xffff0000, v8
            v_lshlrev_b32 v12, 16, v{xr}
            v_and_b32 v13, 0xffff0000, v{xr}
            v_add_f32 v10, v10, v12
            v_add_f32 v11, v11, v13
            v_cvt_pk_bf16_f32 v8, v10, v11
            v_lshlrev_b32 v10, 16, v8
            v_and_b32 v11, 0xffff0000, v8
            v_lshlrev_b32 v12, 16, v9
            v_and_b32 v13, 0xffff0000, v9
            v_add_f32 v10, v10, v12
            v_add_f32 v11, v11, v13
            v_cvt_pk_bf16_f32 v{xr}, v10, v11
            """)
        if r == 2:
            k('s_mov_b64 exec, s[26:27]')
            k('s_cbranch_execz L_k3_nost')
        k.vmem(f'global_store_dwordx4 v{96+r}, v[{108+4*r}:{111+4*r}], s[24:25]')
    k.label('L_k3_nost')
    k('s_waitcnt vmcnt(0)')
    k('s_mov_b64 exec, -1')
    k.stamp(6)
    if 'ts' in EXP: k('s_memrealtime s[86:87]')
    k.stamp_flush(9, 6, base=0x3100000)
    k.label('L_k3_done')
    k('s_endpgm')
    return k.text(), kernel_desc('gemm2_kernel', 216 + 256, 100, 216)

HEADER = open('parallel_sum__sliding_block__swiglu_ffn__prompt.s.ref').read().split('; Override launch')[0]

def main(path):
    parts = [gen_k1(), gen_k2(), gen_k3()]
    s = HEADER
    s += f'; @launch kernel=gemm1_kernel grid=(256,1,1) block=(256,1,1) lds={K1_LDS}\n'
    s += f'; @launch kernel=attn_kernel grid=(682,1,1) block=(256,1,1) lds={K2_LDS}\n'
    s += f'; @launch kernel=gemm2_kernel grid=(256,1,1) block=(256,1,1) lds={K3_LDS}\n'
    s += '.amdgcn_target "amdgcn-amd-amdhsa--gfx950"\n.text\n'
    for t, d in parts:
        s += t
    s += '.section .rodata,"a"\n'
    for t, d in parts:
        s += '.p2align 6\n' + d
    open(path, 'w').write(s)

if __name__ == '__main__':
    main(sys.argv[1] if len(sys.argv) > 1 else 'parallel_sum__sliding_block__swiglu_ffn__prompt.s')
```

```python
import sys, os
from asmlib import *
EXP = os.environ.get('EXP', '')

XN = 0x0000000
QF = 0x0400000
KF = 0x0800000
VF = 0x0B00000
HF = 0x1000000
OF = 0x1000000
W3F = 0x1A00000
WS_BYTES = 268435456
LOG2E = 1.4426950408889634

def f32hex(x):
    import struct
    return '0x%08x' % struct.unpack('<I', struct.pack('<f', x))[0]

def ws_srd(k, sbase, sptr):
    k(f'''
    s_mov_b32 s{sbase}, s{sptr}
    s_and_b32 s{sbase+1}, s{sptr+1}, 0xffff
    s_mov_b32 s{sbase+2}, {WS_BYTES}
    s_mov_b32 s{sbase+3}, 0x00020000
    ''')

def gen_ln():
    k = K()
    k.raw(kernel_header('ln_kernel'))
    k('''
    s_cmp_ge_u32 s2, 128
    s_cbranch_scc1 L_ln_done
    s_load_dwordx2 s[4:5], s[0:1], 0
    s_load_dwordx2 s[6:7], s[0:1], 72
    v_lshrrev_b32 v1, 4, v0
    s_lshl_b32 s3, s2, 4
    v_add_u32 v1, s3, v1                  ; row
    v_and_b32 v2, 15, v0                  ; i
    v_lshrrev_b32 v3, 5, v1
    v_mul_u32_u24 v3, 40960, v3
    v_and_b32 v73, 31, v1
    v_lshl_add_u32 v3, v73, 4, v3
    v_lshl_add_u32 v3, v2, 9, v3
    v_mul_u32_u24 v1, 1280, v1
    v_lshl_add_u32 v1, v2, 4, v1
    s_waitcnt lgkmcnt(0)
    ''')
    for c in range(5):
        k(f'global_load_dwordx4 v[{4+4*c}:{7+4*c}], v1, s[4:5] offset:{256*c}')
    k('s_waitcnt vmcnt(0)')
    for j in range(20):
        k(f'v_lshlrev_b32 v{32+2*j}, 16, v{4+j}')
        k(f'v_and_b32 v{33+2*j}, 0xffff0000, v{4+j}')
    for a in range(4):
        k(f'v_add_f32 v{24+a}, v{32+a}, v{36+a}')
    for j in range(8, 40, 4):
        for a in range(4):
            k(f'v_add_f32 v{24+a}, v{24+a}, v{32+j+a}')
    k('''
    v_add_f32 v24, v24, v25
    v_add_f32 v26, v26, v27
    v_add_f32 v24, v24, v26
    ''')
    def dpp_reduce(r):
        for sh in (8, 4, 2, 1):
            k('s_nop 1')
            k(f'v_add_f32_dpp v{r}, v{r}, v{r} row_ror:{sh} row_mask:0xf bank_mask:0xf')
    dpp_reduce(24)
    k(f'v_mul_f32 v24, {f32hex(1.0/640)}, v24')
    for a in range(4):
        k(f'v_sub_f32 v72, v{32+a}, v24')
        k(f'v_mul_f32 v{26+a}, v72, v72')
    for j in range(4, 40):
        k(f'v_sub_f32 v72, v{32+j}, v24')
        k(f'v_fmac_f32 v{26+(j&3)}, v72, v72')
    k('''
    v_add_f32 v26, v26, v27
    v_add_f32 v28, v28, v29
    v_add_f32 v26, v26, v28
    ''')
    dpp_reduce(26)
    k(f'v_mul_f32 v26, {f32hex(1.0/640)}, v26')
    k(f'''
    v_cvt_pk_bf16_f32 v27, v24, v26
    v_lshlrev_b32 v24, 16, v27            ; m_b
    v_and_b32 v26, 0xffff0000, v27        ; var_b
    v_add_f32 v26, {f32hex(1e-5)}, v26
    v_cvt_pk_bf16_f32 v27, v26, v26
    v_lshlrev_b32 v26, 16, v27
    v_sqrt_f32 v26, v26
    s_nop 0
    v_cvt_pk_bf16_f32 v27, v26, v26
    v_lshlrev_b32 v26, 16, v27
    v_rcp_f32 v26, v26
    ''')
    for j in range(20):
        a, b = 32 + 2 * j, 33 + 2 * j
        k(f'''
        v_sub_f32 v{a}, v{a}, v24
        v_sub_f32 v{b}, v{b}, v24
        v_cvt_pk_bf16_f32 v72, v{a}, v{b}
        v_lshlrev_b32 v{a}, 16, v72
        v_and_b32 v{b}, 0xffff0000, v72
        v_mul_f32 v{a}, v{a}, v26
        v_mul_f32 v{b}, v{b}, v26
        v_cvt_pk_bf16_f32 v{4+j}, v{a}, v{b}
        ''')
    for c in range(5):
        k(f'global_store_dwordx4 v3, v[{4+4*c}:{7+4*c}], s[6:7]')
        if c < 4:
            k('v_add_u32 v3, 8192, v3')
    k('s_waitcnt vmcnt(0)')
    k.label('L_ln_done')
    k('s_endpgm')
    return k.text(), kernel_desc('ln_kernel', 80, 16, 80)

K1_NCH = 10
K1_RING = 4
K1_BUF = 20480
K1_AOFF = K1_RING * K1_BUF
K1_CS = K1_AOFF + 65536
K1_LDS = K1_CS + 1024
ST = 0x1F00000
ACC0 = 96
WF0 = 64
WFR = 6
def acc(t, sub):
    return ACC0 + (t * 2 + sub) * 16

def stats_loads(k, ld, vaddr, sx, tag):
    for c in range(5):
        k.vmem(f'global_load_dwordx4 v[{ld+4*c}:{ld+4*c+3}], v{vaddr}, s[{sx}:{sx+1}] offset:{256*c}', tag)

def stats_compute(k, ld, up, tmp):
    t0 = tmp
    for j in range(20):
        k(f'v_lshlrev_b32 v{up[2*j]}, 16, v{ld+j}')
        k(f'v_and_b32 v{up[2*j+1]}, 0xffff0000, v{ld+j}')
    for a in range(4):
        k(f'v_add_f32 v{t0+a}, v{up[a]}, v{up[4+a]}')
    for j in range(8, 40, 4):
        for a in range(4):
            k(f'v_add_f32 v{t0+a}, v{t0+a}, v{up[j+a]}')
    k(f"""
    v_add_f32 v{t0}, v{t0}, v{t0+1}
    v_add_f32 v{t0+2}, v{t0+2}, v{t0+3}
    v_add_f32 v{t0}, v{t0}, v{t0+2}
    """)
    def dpp_reduce(r):
        for sh in (8, 4, 2, 1):
            k('s_nop 1')
            k(f'v_add_f32_dpp v{r}, v{r}, v{r} row_ror:{sh} row_mask:0xf bank_mask:0xf')
    dpp_reduce(t0)
    k(f'v_mul_f32 v{t0}, {f32hex(1.0/640)}, v{t0}')
    for a in range(4):
        k(f'v_sub_f32 v{t0+7}, v{up[a]}, v{t0}')
        k(f'v_mul_f32 v{t0+2+a}, v{t0+7}, v{t0+7}')
    for j in range(4, 40):
        k(f'v_sub_f32 v{t0+7}, v{up[j]}, v{t0}')
        k(f'v_fmac_f32 v{t0+2+(j&3)}, v{t0+7}, v{t0+7}')
    k(f"""
    v_add_f32 v{t0+2}, v{t0+2}, v{t0+3}
    v_add_f32 v{t0+4}, v{t0+4}, v{t0+5}
    v_add_f32 v{t0+2}, v{t0+2}, v{t0+4}
    """)
    dpp_reduce(t0 + 2)
    k(f"""
    v_mul_f32 v{t0+2}, {f32hex(1.0/640)}, v{t0+2}
    v_cvt_pk_bf16_f32 v{t0+3}, v{t0}, v{t0+2}
    v_lshlrev_b32 v{t0}, 16, v{t0+3}
    v_and_b32 v{t0+2}, 0xffff0000, v{t0+3}
    v_add_f32 v{t0+2}, {f32hex(1e-5)}, v{t0+2}
    v_cvt_pk_bf16_f32 v{t0+3}, v{t0+2}, v{t0+2}
    v_lshlrev_b32 v{t0+2}, 16, v{t0+3}
    v_sqrt_f32 v{t0+2}, v{t0+2}
    s_nop 0
    v_cvt_pk_bf16_f32 v{t0+3}, v{t0+2}, v{t0+2}
    v_lshlrev_b32 v{t0+2}, 16, v{t0+3}
    v_rcp_f32 v{t0+1}, v{t0+2}
    s_nop 0
    """)

def k1_mainloop(k, vmode, qk=False):
    PD = 4
    nfr = K1_NCH * 20
    def frag_read(n):
        c, r = divmod(n, 20)
        s, t = divmod(r, 5)
        buf = c % K1_RING
        base = (28 if buf < 2 else 32) + s
        off = (buf & 1) * K1_BUF + t * (80 if qk else 32)
        if qk and t == 4:
            k(f'v_add_u32 v93, v9, v{base}')
            base = 93
            off = (buf & 1) * K1_BUF
        d = WF0 + (n % WFR) * 4
        k.lds(f'ds_read_b64_tr_b16 v[{d}:{d+1}], v{base} offset:{off}', ('fr', n))
        k.lds(f'ds_read_b64_tr_b16 v[{d+2}:{d+3}], v{base} offset:{off + 4*320}', ('fr', n))
    def AR_ops(c):
        ops = []
        for sub in range(2):
            for s in range(4):
                d = (c % 2) * 32 + (sub * 4 + s) * 4
                def f(d=d, sub=sub, s=s):
                    if not ('noAR' in EXP and c > 1):
                        k.lds(f'ds_read_b128 a[{d}:{d+3}], v{50+s} offset:{(c % 2)*8192 + sub*4096}', ('A', c))
                ops.append(f)
        return ops
    def AD_ops(c):
        ops = []
        for j in range(8):
            def f(j=j):
                k(f's_add_u32 m0, s34, {(c % 2)*8192 + j*1024}')
                k('s_nop 0')
                if not ('noAD' in EXP and c > 1):
                    k.vmem(f'global_load_lds_dwordx4 v{56+j}, s[4:5]', ('AD', c))
                if j == 7:
                    k('s_add_u32 s4, s4, 128')
                    k('s_addc_u32 s5, s5, 0')
            ops.append(f)
        return ops
    def D_ops(c):
        ops = []
        buf = c % K1_RING
        for j in range(5):
            def f(j=j):
                k(f's_add_u32 m0, s21, {buf*K1_BUF + j*1024}')
                k('s_nop 0')
                if not ('noWD' in EXP and c > 2):
                    k.vmem(f'global_load_lds_dwordx4 v[{40+2*j}:{41+2*j}], off', ('D', c))
                k(f'v_add_co_u32 v{40+2*j}, vcc, s20, v{40+2*j}')
                k(f'v_addc_co_u32 v{41+2*j}, vcc, 0, v{41+2*j}, vcc')
            ops.append(f)
        return ops
    return frag_read, AR_ops, AD_ops, D_ops, PD, nfr

def k1_loop(k, vmode, qk=False):
    frag_read, AR_ops, AD_ops, D_ops, PD, nfr = k1_mainloop(k, vmode, qk)
    for r in range(10, 25):
        k(f'v_mov_b32 v{r}, 0')
    k('v_mov_b32 v9, v6')
    k.wait_vm(('D', 0))
    k('s_barrier')
    k.stamp(1)
    k.wait_vm(('AD', 0))
    for f in AR_ops(0):
        f()
    for n in range(PD):
        frag_read(n)
    k.wait_lg(('A', 0))
    for f in AD_ops(2):
        f()
    for c in range(K1_NCH):
        if c == 1: k.stamp(2)
        if c == 5 and 'tsx' not in EXP: k.stamp(3)
        sched = {i: [] for i in range(40)}
        if c + 1 < K1_NCH:
            for i, f in enumerate(AR_ops(c + 1)):
                sched[10 + i].append(f)
        if c + 3 < K1_NCH:
            for i, f in enumerate(D_ops(c + 3)):
                sched[9 + 3 * i].append(f)
            for i, f in enumerate(AD_ops(c + 3)):
                sched[23 + 2 * i].append(f)
        for s in range(4):
            for t in range(5):
                n = c * 20 + s * 5 + t
                st = s * 5 + t
                if n + PD < nfr:
                    frag_read(n + PD)
                if st == 0:
                    k.wait_lg(('A', c))
                if st == 4 and c + 1 < K1_NCH:
                    k.wait_vm(('AD', c + 1))
                    k.wait_vm(('D', c + 1))
                    k('s_barrier')
                    if c == 1:
                        lb = k.newlabel('L_flag')
                        k(f"""
                        s_cmp_lg_u32 s14, 0
                        s_cbranch_scc1 {lb}
                        v_mov_b32 v36, s13
                        v_mov_b32 v37, 1
                        s_mov_b64 exec, 1
                        global_store_byte v36, v37, s[36:37] sc0 sc1
                        s_mov_b64 exec, -1
                        """)
                        k.label(lb)
                if st == 11 and c + 3 < K1_NCH:
                    k.wait_lg(('A', c + 1))
                if c == 7 and st == 6:
                    k('v_and_b32 v36, 7, v2')
                    k('v_lshlrev_b32 v36, 2, v36')
                    k.vmem('global_load_dword v25, v36, s[36:37] sc0 sc1', 'flag')
                if c == 8 and st == 6:
                    k.wait_vm('flag')
                    k('v_cmp_ne_u32 vcc, 0x01010101, v25')
                    k('v_lshlrev_b32 v36, 3, v3')
                    k('s_nop 2')
                    k('s_cmp_eq_u64 vcc, 0')
                    k('s_cselect_b32 s48, 1, 0')
                    k.vmem('global_load_dwordx2 v[94:95], v36, s[42:43] sc0 sc1', 'stat')
                    k.vmem('global_load_dwordx2 v[26:27], v36, s[42:43] offset:256 sc0 sc1', 'stat')
                k.wait_lg(('fr', n))
                wf = WF0 + (n % WFR) * 4
                for sub in range(2):
                    xa = (c % 2) * 32 + (sub * 4 + s) * 4
                    a = acc(t, sub)
                    cin = '0' if (c == 0 and s == 0) else f'v[{a}:{a+15}]'
                    if not vmode:
                        k(f'v_mfma_f32_32x32x16_bf16 v[{a}:{a+15}], v[{wf}:{wf+3}], a[{xa}:{xa+3}], {cin}')
                    else:
                        k(f'v_mfma_f32_32x32x16_bf16 v[{a}:{a+15}], a[{xa}:{xa+3}], v[{wf}:{wf+3}], {cin}')
                    if s == 0 and 'noCS' not in EXP:
                        k(f'v_lshlrev_b32 v36, 16, v{wf+2*sub}')
                        k(f'v_and_b32 v37, 0xffff0000, v{wf+2*sub}')
                        k(f'v_lshlrev_b32 v38, 16, v{wf+2*sub+1}')
                        k(f'v_and_b32 v39, 0xffff0000, v{wf+2*sub+1}')
                        k(f'v_add_f32 v{88+t}, v{88+t}, v36')
                        k(f'v_add_f32 v{10+t}, v{10+t}, v37')
                        k(f'v_add_f32 v{15+t}, v{15+t}, v38')
                        k(f'v_add_f32 v{20+t}, v{20+t}, v39')
                    for f in sched[2 * st + sub]:
                        f()
    if 'tsx' in EXP: k.stamp(3)
    for t in range(5):
        k(f'v_add_f32 v{88+t}, v{88+t}, v{10+t}')
        k(f'v_add_f32 v{15+t}, v{15+t}, v{20+t}')
    for t in range(5):
        k(f'v_add_f32 v{88+t}, v{88+t}, v{15+t}')
    k(f"""
    v_lshlrev_b32 v5, 2, v2
    v_add_u32 v5, s34, v5                  ; own x staging area (free now): [t][64 lanes] floats
    """)
    for t in range(5):
        k.lds(f'ds_write_b32 v5, v{88+t} offset:{t*256}')
    k.wait_lg_all()
    k('s_barrier')
    k(f"""
    v_lshrrev_b32 v5, 5, v0
    v_lshlrev_b32 v5, 8, v5
    v_and_b32 v6, 31, v0
    v_lshl_add_u32 v5, v6, 2, v5
    v_add_u32 v5, {K1_AOFF}, v5
    """)
    for w in range(4):
        k.lds(f'ds_read2_b32 v[{10+2*w}:{11+2*w}], v5 offset0:{w*320 % 256} offset1:{(w*320+32) % 256}' if False else f'ds_read_b32 v{10+2*w}, v5 offset:{w*16384}')
        k.lds(f'ds_read_b32 v{11+2*w}, v5 offset:{w*16384 + 128}')
    k.wait_lg_all()
    k(f"""
    v_add_f32 v10, v10, v11
    v_add_f32 v12, v12, v13
    v_add_f32 v14, v14, v15
    v_add_f32 v16, v16, v17
    v_add_f32 v10, v10, v12
    v_add_f32 v14, v14, v16
    v_add_f32 v10, v10, v14
    v_lshlrev_b32 v5, 2, v0
    v_add_u32 v5, {K1_CS}, v5
    ds_write_b32 v5, v10
    s_waitcnt lgkmcnt(0)
    s_barrier
    """)
    k.stamp(4)

def k1_get_stats(k, tagn):
    lp = f'L_k1_poll{tagn}'; ok = f'L_k1_ok{tagn}'; fb = f'L_k1_fb{tagn}'
    k(f"""
    s_cmp_eq_u32 s48, 1
    s_cbranch_scc1 L_k1_fast{tagn}
    s_mov_b32 s40, 4096
    v_and_b32 v5, 7, v2
    v_lshlrev_b32 v5, 2, v5
    s_mov_b32 s41, 0x01010101
    """)
    k.label(lp)
    k(f"""
    global_load_dword v6, v5, s[36:37] sc0 sc1
    s_waitcnt vmcnt(0)
    v_cmp_ne_u32 vcc, s41, v6
    s_nop 3
    s_cmp_eq_u64 vcc, 0
    s_cbranch_scc1 {ok}
    s_sleep 4
    s_sub_u32 s40, s40, 1
    s_cmp_lg_u32 s40, 0
    s_cbranch_scc1 {lp}
    ; ---- fallback: compute stats of this wave's 64 rows here (16 passes of 4 rows)
    v_lshrrev_b32 v5, 4, v2
    v_add_u32 v5, s22, v5                  ; row
    v_lshlrev_b32 v7, 3, v5
    v_mul_u32_u24 v5, 1280, v5
    v_and_b32 v6, 15, v2
    v_lshl_add_u32 v5, v6, 4, v5
    s_mov_b32 s40, 16
    """)
    k.label(fb)
    sv = k.vm; k.vm = []
    stats_loads(k, 8, 5, 38, 'st')
    k.wait_vm_all()
    up = list(range(64, 88)) + list(range(40, 56))
    stats_compute(k, 8, up, 28)
    k(f"""
    s_mov_b32 exec_lo, 0x00010001
    s_mov_b32 exec_hi, 0x00010001
    global_store_dwordx2 v7, v[28:29], s[42:43] sc0 sc1
    s_mov_b64 exec, -1
    v_add_u32 v5, 5120, v5
    v_add_u32 v7, 32, v7
    s_sub_u32 s40, s40, 1
    s_cmp_lg_u32 s40, 0
    s_cbranch_scc1 {fb}
    s_waitcnt vmcnt(0)
    """)
    k.label(ok)
    k(f"""
    v_lshlrev_b32 v5, 3, v3
    global_load_dwordx2 v[94:95], v5, s[42:43] sc0 sc1
    global_load_dwordx2 v[26:27], v5, s[42:43] offset:256 sc0 sc1
    """)
    k.label(f'L_k1_fast{tagn}')
    k('s_waitcnt vmcnt(0)')
    k.vm = []

def gen_k1():
    k = K()
    k.raw(kernel_header('gemm1_kernel'))
    k("""
    s_cmp_ge_u32 s2, 256
    s_cbranch_scc1 L_k1_done
    """)
    k.stamp(0)
    if 'ts' in EXP: k('s_memrealtime s[84:85]')
    k(f"""
    s_load_dwordx4 s[4:7], s[0:1], 0       ; x, wqkv
    s_load_dwordx4 s[24:27], s[0:1], 32
    s_load_dwordx4 s[44:47], s[0:1], 64
    s_and_b32 s13, s2, 7
    s_lshl_b32 s13, s13, 2
    s_lshr_b32 s3, s2, 3
    s_and_b32 s3, s3, 3
    s_add_u32 s13, s13, s3                 ; ng
    s_lshr_b32 s12, s2, 5                  ; mb
    v_lshrrev_b32 v1, 6, v0
    v_and_b32 v2, 63, v0                   ; lane
    s_nop 0
    v_readfirstlane_b32 s14, v1            ; wave
    s_mul_i32 s21, s14, 5120
    s_lshl_b32 s34, s14, 14
    s_add_u32 s34, s34, {K1_AOFF}
    s_lshl_b32 s22, s12, 8
    s_lshl_b32 s23, s14, 6
    s_add_u32 s22, s22, s23                ; row0
    v_and_b32 v3, 31, v2
    v_add_u32 v3, s22, v3
    v_lshrrev_b32 v4, 5, v2                ; h
    ; stats duty rows: mb*256 + ng*8 + wave*4 + (lane>>4)
    s_lshl_b32 s23, s12, 8
    s_lshl_b32 s35, s13, 3
    s_add_u32 s23, s23, s35
    s_and_b32 s35, s14, 1
    s_lshl_b32 s35, s35, 2
    s_add_u32 s23, s23, s35
    v_lshrrev_b32 v5, 4, v2
    v_add_u32 v5, s23, v5
    v_lshlrev_b32 v7, 3, v5
    v_mul_u32_u24 v5, 1280, v5
    v_and_b32 v6, 15, v2
    v_lshl_add_u32 v5, v6, 4, v5
    s_waitcnt lgkmcnt(0)
    s_mov_b32 s16, s6
    s_mov_b32 s17, s7                      ; wqkv
    s_mov_b32 s6, s46
    s_mov_b32 s7, s47                      ; ws
    s_mov_b32 s38, s4
    s_mov_b32 s39, s5
    s_lshl_b32 s35, s12, 5
    s_add_u32 s36, s44, s35
    s_addc_u32 s37, s45, 0
    s_add_u32 s42, s6, {ST}
    s_addc_u32 s43, s7, 0
    s_mul_i32 s23, s14, 320
    v_add_u32 v36, s23, v2                 ; p for j=0
    s_cmp_ge_u32 s13, 12
    s_cbranch_scc1 L_k1_ffn_addr
    s_mul_i32 s23, s13, 320
    s_add_u32 s16, s16, s23
    s_addc_u32 s17, s17, 0
    s_mov_b32 s20, 245760
    """)
    for j in range(5):
        k(f"""
        v_add_u32 v37, {64*j}, v36
        v_mul_u32_u24 v38, 3277, v37
        v_lshrrev_b32 v38, 16, v38
        v_mul_u32_u24 v39, 20, v38
        v_sub_u32 v39, v37, v39
        v_mul_u32_u24 v38, 3840, v38
        v_lshl_add_u32 v38, v39, 4, v38
        v_mov_b32 v{41+2*j}, s17
        v_add_co_u32 v{40+2*j}, vcc, s16, v38
        v_addc_co_u32 v{41+2*j}, vcc, 0, v{41+2*j}, vcc
        """)
    k('s_branch L_k1_addr_done')
    k.label('L_k1_ffn_addr')
    k("""
    s_sub_u32 s28, s13, 12
    s_mul_i32 s29, s28, 5
    s_lshl_b32 s30, s28, 2
    s_add_u32 s30, s30, 15
    s_cmp_ge_u32 s28, 16
    s_cselect_b32 s29, s30, s29
    s_cselect_b32 s31, 1, 0
    s_lshl_b32 s29, s29, 5
    s_add_u32 s24, s24, s29
    s_addc_u32 s25, s25, 0
    s_add_u32 s26, s26, s29
    s_addc_u32 s27, s27, 0
    s_sub_u32 s26, s26, 160
    s_subb_u32 s27, s27, 0
    s_mov_b32 s20, 196608
    v_mov_b32 v32, s24
    v_mov_b32 v33, s25
    v_mov_b32 v34, s26
    v_mov_b32 v35, s27
    """)
    for j in range(5):
        k(f"""
        v_add_u32 v37, {64*j}, v36
        v_mul_u32_u24 v38, 3277, v37
        v_lshrrev_b32 v38, 16, v38
        v_mul_u32_u24 v39, 20, v38
        v_sub_u32 v39, v37, v39
        v_mul_u32_u24 v38, 3072, v38
        v_lshl_add_u32 v38, v39, 4, v38
        v_cmp_le_u32 vcc, 10, v39
        s_nop 1
        v_cndmask_b32 v37, v32, v34, vcc
        v_cndmask_b32 v{41+2*j}, v33, v35, vcc
        v_add_co_u32 v{40+2*j}, vcc, v37, v38
        v_addc_co_u32 v{41+2*j}, vcc, 0, v{41+2*j}, vcc
        """)
    k.label('L_k1_addr_done')
    frag_read, AR_ops, AD_ops, D_ops, PD, nfr = k1_mainloop(k, False)
    for f in D_ops(0):
        f()
    k(f"""
    ; A DMA source offsets: (row0 + 8j + (l>>3))*1280 + ((l&7) ^ ((4j + (l>>4))&7))*16
    v_lshrrev_b32 v28, 3, v2
    v_add_u32 v28, s22, v28
    v_mul_u32_u24 v28, 1280, v28
    v_and_b32 v29, 7, v2
    v_lshrrev_b32 v30, 4, v2
    v_xor_b32 v29, v29, v30
    v_lshl_add_u32 v30, v29, 4, v28        ; j even
    v_xor_b32 v29, 4, v29
    v_lshl_add_u32 v31, v29, 4, v28        ; j odd
    """)
    for j in range(8):
        k(f'v_add_u32 v{56+j}, {10240*j}, v{31 if j & 1 else 30}')
    for f in AD_ops(0):
        f()
    stats_loads(k, 8, 5, 38, 'st')
    for f in D_ops(1) + AD_ops(1) + D_ops(2):
        f()
    ws_srd(k, 8, 6)
    k(f"""
    v_and_b32 v28, 31, v2
    v_lshrrev_b32 v29, 1, v28
    v_and_b32 v29, 7, v29
    v_lshlrev_b32 v28, 7, v28
    v_add_u32 v28, s34, v28
    v_xor_b32 v30, v4, v29
    s_lshl_b32 s23, s14, 1
    s_and_b32 s35, s23, 6
    v_xor_b32 v31, s35, v30
    v_lshl_add_u32 v50, v31, 4, v28
    s_add_u32 s23, s23, 2
    s_and_b32 s35, s23, 6
    v_xor_b32 v31, s35, v30
    v_lshl_add_u32 v51, v31, 4, v28
    s_add_u32 s23, s23, 2
    s_and_b32 s35, s23, 6
    v_xor_b32 v31, s35, v30
    v_lshl_add_u32 v52, v31, 4, v28
    s_add_u32 s23, s23, 2
    s_and_b32 s35, s23, 6
    v_xor_b32 v31, s35, v30
    v_lshl_add_u32 v53, v31, 4, v28
    v_mul_u32_u24 v54, 2560, v4
    v_and_b32 v28, 15, v2
    v_lshrrev_b32 v28, 2, v28
    v_mul_u32_u24 v28, 320, v28
    v_add_u32 v54, v54, v28
    v_lshrrev_b32 v28, 4, v2
    v_and_b32 v28, 1, v28
    s_cmp_lt_u32 s13, 8
    s_cselect_b32 s23, 40, 160
    v_mul_u32_u24 v29, s23, v28
    v_add_u32 v54, v54, v29
    v_mul_u32_u24 v29, 120, v28
    v_and_b32 v28, 3, v2
    v_lshl_add_u32 v54, v28, 3, v54
    v_lshl_add_u32 v29, v28, 5, v29
    v_add_u32 v6, 32, v29
    v_add_u32 v55, 40960, v54
    v_mov_b32 v88, 0
    v_mov_b32 v89, 0
    v_mov_b32 v90, 0
    v_mov_b32 v91, 0
    v_mov_b32 v92, 0
    s_mov_b32 s48, 0
    """)
    k(f"""
    s_cmp_lg_u32 s14, 3
    s_cbranch_scc1 L_k1_nozero
    v_lshlrev_b32 v28, 4, v2
    v_add_u32 v28, {K1_CS}, v28
    v_mov_b32 v32, 0
    v_mov_b32 v33, 0
    v_mov_b32 v34, 0
    v_mov_b32 v35, 0
    ds_write_b128 v28, v[32:35]
    s_waitcnt lgkmcnt(0)
    """)
    k.label('L_k1_nozero')
    k("""
    s_cmp_ge_u32 s14, 2
    s_cbranch_scc1 L_k1_nostat
    """)
    saved = list(k.vm)
    k.wait_vm('st')
    stats_compute(k, 8, list(range(96, 136)), 28)
    k(f"""
    s_mov_b32 exec_lo, 0x00010001
    s_mov_b32 exec_hi, 0x00010001
    global_store_dwordx2 v7, v[28:29], s[42:43] sc0 sc1
    s_mov_b64 exec, -1
    """)
    k.label('L_k1_nostat')
    k.vm = saved
    for sc in range(4):
        k(f"""
        s_add_u32 s23, s14, {sc}
        s_and_b32 s23, s23, 3
        s_mul_i32 s23, s23, 5120
        v_add_u32 v{28+sc}, s23, v54
        v_add_u32 v{32+sc}, s23, v55
        """)
    k("""
    s_cmp_ge_u32 s13, 12
    s_cbranch_scc1 L_k1_main_n
    s_cmp_ge_u32 s13, 8
    s_cbranch_scc1 L_k1_main_v
    """)
    vm0 = list(k.vm)
    def cs(t, q):
        i = t * 4 + q
        if i < 12: return 40 + i * 4
        i -= 12
        if i < 7: return 12 + i * 4
        return 88
    def prep(tagn):
        k1_get_stats(k, tagn)
        k(f"""
        v_mov_b32 v8, v94
        v_mov_b32 v9, v95
        v_mov_b32 v10, v26
        v_mov_b32 v11, v27
        v_lshlrev_b32 v5, 4, v4                ; h*16 bytes
        v_add_u32 v5, {K1_CS}, v5
        """)
        for t in range(5):
            for q in range(4):
                r = (q >> 1) * 16 + (q & 1) * 8
                k.lds(f'ds_read_b128 v[{cs(t,q)}:{cs(t,q)+3}], v5 offset:{(t*32 + r)*4}', 'cs')
        k.wait_lg_all()
    def correct(t, sub):
        a = acc(t, sub)
        for q in range(4):
            for i in range(0, 4, 2):
                r0 = a + 4 * q + i
                k(f'v_pk_fma_f32 v[{r0}:{r0+1}], v[{8+2*sub}:{9+2*sub}], v[{cs(t,q)+i}:{cs(t,q)+i+1}], v[{r0}:{r0+1}] op_sel:[0,0,0] op_sel_hi:[0,1,1] neg_lo:[1,0,0] neg_hi:[1,0,0]')
                k(f'v_pk_mul_f32 v[{r0}:{r0+1}], v[{r0}:{r0+1}], v[{8+2*sub}:{9+2*sub}] op_sel:[0,1] op_sel_hi:[1,1]')
    k1_loop(k, False, qk=True)
    prep(0)
    k(f"""
    s_mov_b32 s28, {QF}
    s_mov_b32 s29, {KF}
    s_cmp_ge_u32 s13, 4
    s_cselect_b32 s28, s29, s28
    s_and_b32 s29, s13, 3
    s_mul_i32 s29, s29, {8*98304}
    s_add_u32 s28, s28, s29
    v_lshrrev_b32 v5, 4, v3
    v_mul_u32_u24 v5, 768, v5
    v_and_b32 v6, 15, v3
    v_lshl_add_u32 v5, v6, 4, v5           ; keypart
    v_lshl_add_u32 v6, v4, 8, v5           ; + hh*256
    v_mul_u32_u24 v7, 98304, v4
    v_add_u32 v7, v7, v5                   ; + h*98304
    """)
    for t in range(5):
        for sub in range(2):
            correct(t, sub)
            a = acc(t, sub)
            if t < 4:
                for hp in range(2):
                    d = a + 8 * hp
                    k(f'v_cvt_pk_bf16_f32 v{d}, v{d}, v{d+1}')
                    k(f'v_cvt_pk_bf16_f32 v{d+1}, v{d+2}, v{d+3}')
                    k(f'v_cvt_pk_bf16_f32 v{d+2}, v{d+4}, v{d+5}')
                    k(f'v_cvt_pk_bf16_f32 v{d+3}, v{d+6}, v{d+7}')
                    k(f's_add_u32 s29, s28, {(2*t+hp)*98304}')
                    k('s_nop 0')
                    k(f'v_permlane32_swap_b32 v{d}, v{d+2}')
                    k(f'v_permlane32_swap_b32 v{d+1}, v{d+3}')
                    k.vmem(f'buffer_store_dwordx4 v[{d}:{d+3}], v6, s[8:11], s29 offen offset:{sub*1536}')
            else:
                for q in range(4):
                    d = a + 4 * q
                    k(f'v_cvt_pk_bf16_f32 v{d}, v{d}, v{d+1}')
                    k(f'v_cvt_pk_bf16_f32 v{d+1}, v{d+2}, v{d+3}')
                    k(f'v_mov_b32 v{d+2}, 0')
                    k(f'v_mov_b32 v{d+3}, 0')
                    k(f's_add_u32 s29, s28, {2*q*98304}')
                    k.vmem(f'buffer_store_dwordx4 v[{d}:{d+3}], v7, s[8:11], s29 offen offset:{sub*1536 + 512}')
    k('s_branch L_k1_end')
    k.label('L_k1_main_n')
    k.vm = list(vm0); k.lg = []
    k1_loop(k, False)
    prep(2)
    k(f"""
    s_lshl_b32 s28, s29, 4
    s_add_u32 s28, s28, {HF + 20*1024}
    s_add_u32 s30, s28, {2*69632}
    v_lshrrev_b32 v5, 4, v3
    v_mul_u32_u24 v5, 69632, v5
    v_and_b32 v6, 15, v3
    v_lshl_add_u32 v5, v6, 4, v5
    v_lshl_add_u32 v5, v4, 8, v5
    s_mov_b32 s33, {f32hex(-LOG2E)}
    """)
    cnt = 0
    for t in range(5):
        if t == 0:
            k("""
            s_cmp_lg_u32 s31, 0
            s_cbranch_scc1 L_k1_ffn_skip0
            """)
        for sub in range(2):
            correct(t, sub)
            a = acc(t, sub)
            d = a
            cnt += 1
            for i in range(0, 8, 2):
                k(f'v_pk_mul_f32 v[{a+8+i}:{a+9+i}], v[{a+i}:{a+i+1}], v[{a+8+i}:{a+9+i}]')
            for i in range(8):
                k(f'v_mul_f32 v{a+i}, s33, v{a+i}')
            for i in range(8):
                k(f'v_exp_f32 v{a+i}, v{a+i}')
            k('s_nop 0')
            for i in range(8):
                k(f'v_add_f32 v{a+i}, 1.0, v{a+i}')
            for i in range(8):
                k(f'v_rcp_f32 v{a+i}, v{a+i}')
            k('s_nop 0')
            for i in range(0, 8, 2):
                k(f'v_pk_mul_f32 v[{a+8+i}:{a+9+i}], v[{a+i}:{a+i+1}], v[{a+8+i}:{a+9+i}]')
            for pr in range(4):
                k(f'v_cvt_pk_bf16_f32 v{d+pr}, v{a+8+2*pr}, v{a+9+2*pr}')
            k('s_nop 1')
            k(f'v_permlane32_swap_b32 v{d}, v{d+2}')
            k(f'v_permlane32_swap_b32 v{d+1}, v{d+3}')
            so = 's30' if sub else 's28'
            k.vmem(f'buffer_store_dwordx4 v[{d}:{d+3}], v5, s[8:11], {so} offen offset:{t*512}')
        if t == 0:
            k.label('L_k1_ffn_skip0')
    k('s_branch L_k1_end')
    k.label('L_k1_main_v')
    k.vm = list(vm0); k.lg = []
    k1_loop(k, True)
    k1_get_stats(k, 1)
    k(f"""
    s_lshl_b32 s29, s22, 3
    v_lshlrev_b32 v5, 5, v4
    v_add_u32 v5, s29, v5
    v_and_b32 v6, 31, v2
    v_lshlrev_b32 v6, 2, v6
    v_add_u32 v6, {K1_CS}, v6
    """)
    for sub in range(2):
        for q in range(4):
            d = 24 + (sub * 4 + q) * 8
            k(f'global_load_dwordx4 v[{d}:{d+3}], v5, s[42:43] offset:{sub*256 + q*64} sc0 sc1')
            k(f'global_load_dwordx4 v[{d+4}:{d+7}], v5, s[42:43] offset:{sub*256 + q*64 + 16} sc0 sc1')
    for t in range(5):
        k(f'ds_read_b32 v{88+t}, v6 offset:{t*128}')
    k('s_waitcnt vmcnt(0) lgkmcnt(0)')
    for t in range(5):
        for sub in range(2):
            a = acc(t, sub)
            for q in range(4):
                for i in range(4):
                    st = 24 + (sub * 4 + q) * 8 + 2 * i
                    k(f'v_fma_f32 v{a+4*q+i}, -v{st}, v{88+t}, v{a+4*q+i}')
                    k(f'v_mul_f32 v{a+4*q+i}, v{a+4*q+i}, v{st+1}')
    k(f"""
    s_sub_u32 s28, s13, 8
    s_mul_i32 s28, s28, {8*81920}
    s_lshr_b32 s29, s22, 5
    s_mul_i32 s29, s29, 1280
    s_add_u32 s28, s28, s29
    s_add_u32 s28, s28, {VF}
    v_and_b32 v5, 15, v2
    v_lshrrev_b32 v6, 4, v2
    v_and_b32 v6, 1, v6
    v_mul_u32_u24 v6, 80, v6
    v_add_u32 v5, v5, v6
    v_mov_b32 v20, 256
    v_mov_b32 v21, 64
    """)
    cnt = 0
    for t in range(5):
        k(f"""
        v_add_u32 v6, {16*t}, v5
        v_mul_u32_u24 v7, 3277, v6
        v_lshrrev_b32 v7, 16, v7
        v_mul_u32_u24 v16, 20, v7
        v_sub_u32 v6, v6, v16
        v_mul_u32_u24 v7, 81920, v7
        v_lshlrev_b32 v16, 4, v6
        v_add_u32 v17, 768, v16
        v_cmp_gt_u32 vcc, 16, v6
        s_nop 1
        v_cndmask_b32 v16, v17, v16, vcc
        v_cndmask_b32 v17, v21, v20, vcc
        v_add_u32 v7, v7, v16
        v_mad_u32_u24 v18, v17, v4, v7
        v_lshl_add_u32 v19, v17, 1, v18
        """)
        for sub in range(2):
            a = acc(t, sub)
            for q in range(2):
                d = 24 + (cnt % 4) * 4
                cnt += 1
                k(f'v_cvt_pk_bf16_f32 v{d}, v{a+4*q}, v{a+4*q+1}')
                k(f'v_cvt_pk_bf16_f32 v{d+1}, v{a+4*q+2}, v{a+4*q+3}')
                k(f'v_cvt_pk_bf16_f32 v{d+2}, v{a+4*q+8}, v{a+4*q+9}')
                k(f'v_cvt_pk_bf16_f32 v{d+3}, v{a+4*q+10}, v{a+4*q+11}')
                k.vmem(f'buffer_store_dwordx4 v[{d}:{d+3}], v{18 + q}, s[8:11], s28 offen offset:{sub*1280}')
    k.label('L_k1_end')
    k.stamp(5)
    k('s_waitcnt vmcnt(0)')
    k.stamp(6)
    if 'ts' in EXP: k('s_memrealtime s[86:87]')
    k.stamp_flush(9, 6)
    k.label('L_k1_done')
    k('s_endpgm')
    return k.text(), kernel_desc('gemm1_kernel', 256 + 64, 100, 256)

K2_VOFF = 24576
K2_LDS = K2_VOFF + 15360 + 1024
def gen_k2():
    k = K()
    k.raw(kernel_header('attn_kernel'))
    S0 = 64
    def S(a, kt):
        return S0 + (a * 18 + kt) * 4
    KF0 = 32
    QR = 48
    VF0 = 208
    OA = 240
    k(f'''
    s_cmp_ge_u32 s2, 512
    s_cbranch_scc1 L_k2_relay
    ''')
    k.stamp(0)
    if 'ts' in EXP: k('s_memrealtime s[84:85]')
    k(f'''
    s_load_dwordx2 s[6:7], s[0:1], 72
    s_and_b32 s12, s2, 7
    s_lshl_b32 s12, s12, 2
    s_lshr_b32 s13, s2, 7
    s_add_u32 s12, s12, s13                ; head
    s_lshr_b32 s13, s2, 3
    s_and_b32 s13, s13, 15
    s_lshl_b32 s13, s13, 7                 ; q0
    v_lshrrev_b32 v1, 6, v0
    v_and_b32 v2, 63, v0
    s_nop 0
    v_readfirstlane_b32 s14, v1            ; wave
    v_lshlrev_b32 v3, 4, v2                ; lane*16
    s_lshr_b32 s15, s13, 4
    s_mul_i32 s16, s14, 6
    s_add_u32 s15, s15, s16
    s_sub_u32 s15, s15, 16
    s_mul_i32 s15, s15, 768
    s_mul_i32 s16, s12, 98304
    s_add_u32 s15, s15, s16
    s_add_u32 s15, s15, {KF}
    s_mul_i32 s17, s14, 6144
    s_lshr_b32 s20, s13, 5
    s_sub_u32 s20, s20, 8
    s_mul_i32 s20, s20, 1280
    s_mul_i32 s21, s12, 81920
    s_add_u32 s20, s20, s21
    s_lshl_b32 s21, s14, 12
    s_add_u32 s20, s20, s21
    s_add_u32 s20, s20, {VF}
    s_add_u32 s21, s21, {K2_VOFF}
    v_mov_b32 v{QR}, 0
    v_mov_b32 v{QR+1}, 0
    v_mov_b32 v{QR+2}, 0
    v_mov_b32 v{QR+3}, 0
    v_mov_b32 v{QR+4}, 0
    v_mov_b32 v{QR+5}, 0
    v_mov_b32 v{QR+6}, 0
    v_mov_b32 v{QR+7}, 0
    s_waitcnt lgkmcnt(0)
    s_add_u32 s18, s6, s15
    s_addc_u32 s19, s7, 0
    s_add_u32 s22, s6, s20
    s_addc_u32 s23, s7, 0
    s_mov_b32 m0, s21
    s_nop 0
    ''')
    for j in range(3):
        k.vmem(f'global_load_lds_dwordx4 v3, s[22:23] offset:{j*1024}', 'dma')
    lb = k.newlabel('L_k2_v3')
    k('s_cmp_eq_u32 s14, 3')
    k(f's_cbranch_scc1 {lb}')
    k(f'global_load_lds_dwordx4 v3, s[22:23] offset:3072')
    k.label(lb)
    k('s_mov_b32 exec_hi, 0xffff')
    for j in range(6):
        k(f's_add_u32 m0, s17, {j*1024}')
        k('s_nop 0')
        k.vmem(f'global_load_lds_dwordx4 v3, s[18:19]', 'dma')
        k('s_add_u32 s18, s18, 768')
        k('s_addc_u32 s19, s19, 0')
    k(f'''
    s_lshl_b32 s24, s14, 5                 ; 32w
    s_add_u32 s25, s13, s24                ; q0 + 32w
    s_lshr_b32 s26, s25, 4
    s_mul_i32 s26, s26, 768
    s_mul_i32 s27, s12, 98304
    s_add_u32 s26, s26, s27
    s_add_u32 s26, s26, {QF}
    s_add_u32 s18, s6, s26
    s_addc_u32 s19, s7, 0
    ''')
    k.vmem(f'global_load_dwordx4 v[{QR}:{QR+3}], v3, s[18:19]', 'q')
    k.vmem(f'global_load_dwordx4 v[{QR+4}:{QR+7}], v3, s[18:19] offset:768', 'q')
    k('s_mov_b64 exec, -1')
    k(f'''
    v_and_b32 v5, 15, v2                   ; l&15
    v_lshrrev_b32 v6, 4, v2                ; g
    v_lshlrev_b32 v7, 10, v6
    v_lshl_add_u32 v7, v5, 4, v7
    v_add_u32 v7, s17, v7
    v_mov_b32 v12, 0
    v_mov_b32 v13, 0
    v_mov_b32 v14, 0
    v_mov_b32 v15, 0
    ds_write_b128 v7, v[12:15] offset:768
    s_mov_b32 exec_hi, 0
    ds_write_b128 v7, v[12:15] offset:{4096+768}
    s_mov_b64 exec, -1
    s_lshl_b32 s26, s14, 11                ; 2w*1024
    v_add_u32 v8, s26, v3
    s_mul_i32 s26, s14, 1280
    s_add_u32 s26, s26, {K2_VOFF}
    v_add_u32 v9, s26, v3
    v_and_b32 v10, 3, v5
    v_lshlrev_b32 v10, 4, v10
    v_lshl_add_u32 v10, v6, 6, v10
    v_add_u32 v10, s26, v10
    s_sub_u32 s25, s25, 256
    v_lshlrev_b32 v11, 2, v6
    v_sub_u32 v11, v5, v11                 ; (l&15) - 4g
    v_cmp_le_i32 s[32:33], 0, v11
    v_cmp_le_i32 s[34:35], 1, v11
    v_cmp_le_i32 s[36:37], 2, v11
    v_cmp_le_i32 s[38:39], 3, v11
    v_mov_b32 v11, 0xff800000              ; -inf
    s_mov_b32 s40, {f32hex(LOG2E * 20 ** -0.5)}
    s_waitcnt lgkmcnt(0)
    ''')
    k.wait_vm_all()
    k('s_barrier')
    k.stamp(1)
    PD = 3
    def kread(kt):
        d = KF0 + (kt % 4) * 4
        k.lds(f'ds_read_b128 v[{d}:{d+3}], v8 offset:{kt*1024}', ('k', kt))
    for kt in range(PD):
        kread(kt)
    for kt in range(18):
        if kt + PD < 18:
            kread(kt + PD)
        k.wait_lg(('k', kt))
        d = KF0 + (kt % 4) * 4
        for a in range(2):
            if (a == 0 and kt == 17) or (a == 1 and kt == 0):
                continue
            s = S(a, kt)
            k(f'v_mfma_f32_16x16x32_bf16 v[{s}:{s+3}], v[{d}:{d+3}], v[{QR+4*a}:{QR+4*a+3}], 0')
    def vread(p):
        d = VF0 + (p % 4) * 8
        k.lds(f'ds_read_b128 v[{d}:{d+3}], v9 offset:{p*1280}', ('v', p))
        k.lds(f'ds_read_b128 v[{d+4}:{d+7}], v10 offset:{p*1280 + 1024}', ('v', p))
    for p in range(3):
        vread(p)
    k('s_nop 7')
    k('s_nop 1')
    k.stamp(2)
    for p in range(8):
        lb = k.newlabel('L_k2_v')
        k(f's_cmp_ge_i32 s25, {-32*p}')
        k(f's_cbranch_scc1 {lb}')
        for a in range(2):
            for kt in (2 * p, 2 * p + 1):
                if (a == 0 and kt == 17) or (a == 1 and kt == 0):
                    continue
                for r in range(4):
                    k(f'v_mov_b32 v{S(a,kt)+r}, v11')
        k.label(lb)
    for a in range(2):
        for r in range(4):
            s = S(a, a) + r
            k(f'v_cndmask_b32 v{s}, v{s}, v11, s[{32+2*r}:{33+2*r}]')
            s = S(a, a + 16) + r
            k(f'v_cndmask_b32 v{s}, v11, v{s}, s[{32+2*r}:{33+2*r}]')
    for a in range(2):
        regs = [S(a, kt) + r for kt in range(a, a + 17) for r in range(4)]
        m = 12 + a
        k(f'v_max3_f32 v{m}, v{regs[0]}, v{regs[1]}, v{regs[2]}')
        i = 3
        while i < len(regs):
            if i + 1 < len(regs):
                k(f'v_max3_f32 v{m}, v{m}, v{regs[i]}, v{regs[i+1]}')
                i += 2
            else:
                k(f'v_max_f32 v{m}, v{m}, v{regs[i]}')
                i += 1
    def xlane(op, r):
        k(f'''
        v_mov_b32 v16, v{r}
        s_nop 1
        v_permlane32_swap_b32 v16, v{r}
        s_nop 1
        {op} v{r}, v{r}, v16
        v_mov_b32 v16, v{r}
        s_nop 1
        v_permlane16_swap_b32 v16, v{r}
        s_nop 1
        {op} v{r}, v{r}, v16
        ''')
    for a in range(2):
        xlane('v_max_f32', 12 + a)
        k(f'v_mul_f32 v{12+a}, s40, v{12+a}')
    k.stamp(3)
    for a in range(2):
        k(f'v_mov_b32 v{14+a}, 0')
        for kt in range(a, a + 17):
            s = S(a, kt)
            for r in range(4):
                k(f'v_fma_f32 v{s+r}, v{s+r}, s40, -v{12+a}')
            for r in range(4):
                k(f'v_exp_f32 v{s+r}, v{s+r}')
            k('s_nop 0')
            k(f'v_add_f32 v17, v{s}, v{s+1}')
            k(f'v_add_f32 v18, v{s+2}, v{s+3}')
            k(f'v_add_f32 v17, v17, v18')
            k(f'v_add_f32 v{14+a}, v{14+a}, v17')
    for a in range(2):
        for p in range(9):
            s0, s1 = S(a, 2 * p), S(a, 2 * p + 1)
            if a == 1 and p == 0:
                k(f'v_mov_b32 v{s0}, 0')
                k(f'v_mov_b32 v{s0+1}, 0')
            else:
                k(f'v_cvt_pk_bf16_f32 v{s0}, v{s0}, v{s0+1}')
                k(f'v_cvt_pk_bf16_f32 v{s0+1}, v{s0+2}, v{s0+3}')
            if a == 0 and p == 8:
                k(f'v_mov_b32 v{s0+2}, 0')
                k(f'v_mov_b32 v{s0+3}, 0')
            else:
                k(f'v_cvt_pk_bf16_f32 v{s0+2}, v{s1}, v{s1+1}')
                k(f'v_cvt_pk_bf16_f32 v{s0+3}, v{s1+2}, v{s1+3}')
    for a in range(2):
        xlane('v_add_f32', 14 + a)
        k(f'v_rcp_f32 v{14+a}, v{14+a}')
    k.stamp(4)
    for p in range(9):
        if p + 3 < 9:
            vread(p + 3)
        k.wait_lg(('v', p))
        d = VF0 + (p % 4) * 8
        for a in range(2):
            for dt in range(2):
                o = OA + (a * 2 + dt) * 4
                cin = '0' if p == 0 else f'v[{o}:{o+3}]'
                s0 = S(a, 2 * p)
                k(f'v_mfma_f32_16x16x32_bf16 v[{o}:{o+3}], v[{d+4*dt}:{d+4*dt+3}], v[{s0}:{s0+3}], {cin}')
    k(f'''
    s_add_u32 s26, s13, s24
    s_lshr_b32 s26, s26, 4
    s_mul_i32 s26, s26, 69632
    s_add_u32 s26, s26, {OF}
    s_add_u32 s18, s6, s26
    s_addc_u32 s19, s7, 0
    s_mul_i32 s27, s12, 20
    v_lshl_add_u32 v20, v6, 2, s27
    v_add_u32 v22, 16, v20
    v_lshrrev_b32 v21, 3, v20
    v_lshlrev_b32 v21, 8, v21
    v_and_b32 v20, 4, v20
    v_lshl_add_u32 v21, v20, 1, v21
    v_lshl_add_u32 v20, v5, 4, v21
    v_lshrrev_b32 v21, 3, v22
    v_lshlrev_b32 v21, 8, v21
    v_and_b32 v22, 4, v22
    v_lshl_add_u32 v21, v22, 1, v21
    v_lshl_add_u32 v21, v5, 4, v21
    v_add_u32 v22, 69632, v20
    v_add_u32 v23, 69632, v21
    s_nop 3
    ''')
    for a in range(2):
        for dt in range(2):
            o = OA + (a * 2 + dt) * 4
            for r in range(4):
                k(f'v_mul_f32 v{o+r}, v{o+r}, v{14+a}')
            k(f'v_cvt_pk_bf16_f32 v{o}, v{o}, v{o+1}')
            k(f'v_cvt_pk_bf16_f32 v{o+1}, v{o+2}, v{o+3}')
    for a in range(2):
        o = OA + (a * 2) * 4
        k.vmem(f'global_store_dwordx2 v{20+2*a}, v[{o}:{o+1}], s[18:19]')
    k('s_mov_b64 exec, 0xffff')
    for a in range(2):
        o = OA + (a * 2 + 1) * 4
        k.vmem(f'global_store_dwordx2 v{21+2*a}, v[{o}:{o+1}], s[18:19]')
    k('s_mov_b64 exec, -1')
    k.stamp(5)
    k('s_waitcnt vmcnt(0)')
    k.stamp(6)
    if 'ts' in EXP: k('s_memrealtime s[86:87]')
    k.stamp_flush(9, 6, base=0x3200000)
    k.label('L_k2_done')
    k('s_endpgm')
    k.label('L_k2_relay')
    k(f"""
    s_cmp_ge_u32 s2, 682
    s_cbranch_scc1 L_k2_done
    s_load_dwordx2 s[8:9], s[0:1], 16      ; wo
    s_load_dwordx2 s[10:11], s[0:1], 48    ; w_down
    s_load_dwordx2 s[6:7], s[0:1], 72      ; ws
    s_sub_u32 s12, s2, 512
    s_mul_i32 s13, s12, 13108
    s_lshr_b32 s13, s13, 16                ; kb = u // 5
    s_mul_i32 s14, s13, 5
    s_sub_u32 s14, s12, s14                ; nb
    v_lshrrev_b32 v1, 6, v0
    v_and_b32 v2, 63, v0
    s_nop 0
    v_readfirstlane_b32 s15, v1            ; wave
    v_lshrrev_b32 v3, 4, v2
    v_mul_u32_u24 v3, 1280, v3
    v_and_b32 v4, 15, v2
    v_lshl_add_u32 v3, v4, 4, v3
    s_waitcnt lgkmcnt(0)
    s_cmp_ge_u32 s13, 10
    s_cselect_b32 s16, s10, s8
    s_cselect_b32 s17, s11, s9
    s_cselect_b32 s18, 10, 0
    s_sub_u32 s18, s13, s18                ; 64-k block inside its matrix
    s_lshl_b32 s18, s18, 6
    s_lshl_b32 s19, s15, 4
    s_add_u32 s18, s18, s19
    s_mul_i32 s18, s18, 1280
    s_lshl_b32 s19, s14, 8
    s_add_u32 s18, s18, s19
    s_add_u32 s16, s16, s18
    s_addc_u32 s17, s17, 0
    s_lshl_b32 s20, s15, 12
    """)
    for j in range(4):
        k(f's_add_u32 m0, s20, {j*1024}')
        k('s_nop 0')
        k(f'global_load_lds_dwordx4 v3, s[16:17]')
        k('s_add_u32 s16, s16, 5120')
        k('s_addc_u32 s17, s17, 0')
    k(f"""
    v_lshrrev_b32 v5, 4, v2                ; g
    v_lshrrev_b32 v6, 2, v4                ; i = (l&15)>>2
    v_lshl_add_u32 v6, v5, 3, v6           ; row = 8g + i
    v_lshlrev_b32 v6, 8, v6
    v_and_b32 v7, 3, v2
    v_lshl_add_u32 v6, v7, 3, v6
    s_lshl_b32 s21, s15, 6
    v_add_u32 v6, s21, v6                  ; + 2w*32 bytes
    s_waitcnt vmcnt(0)
    s_barrier
    """)
    for nt in range(2):
        for ks in range(2):
            d = 8 + (nt * 2 + ks) * 4
            k(f'ds_read_b64_tr_b16 v[{d}:{d+1}], v6 offset:{ks*32*256 + nt*32}')
            k(f'ds_read_b64_tr_b16 v[{d+2}:{d+3}], v6 offset:{ks*32*256 + 4*256 + nt*32}')
    k(f"""
    s_lshl_b32 s22, s14, 3
    s_lshl_b32 s23, s15, 1
    s_add_u32 s22, s22, s23
    s_mul_i32 s22, s22, 68
    s_lshl_b32 s23, s13, 1
    s_add_u32 s22, s22, s23
    s_lshl_b32 s22, s22, 10
    s_add_u32 s22, s22, {W3F}
    s_add_u32 s16, s6, s22
    s_addc_u32 s17, s7, 0
    v_lshlrev_b32 v7, 4, v2
    v_add_u32 v3, {68*1024}, v7
    s_waitcnt lgkmcnt(0)
    """)
    for nt in range(2):
        for ks in range(2):
            d = 8 + (nt * 2 + ks) * 4
            k(f'global_store_dwordx4 v{3 if nt else 7}, v[{d}:{d+3}], s[16:17] offset:{ks*1024}')
    k('s_waitcnt vmcnt(0)')
    k('s_endpgm')
    return k.text(), kernel_desc('attn_kernel', 256, 100, 256)

K3_NS = 8
K3_PSTR = 336
K3_LDS = 4 * 64 * K3_PSTR
K3_AC0 = 16; K3_AV = 130; K3_WV = 120
def k3_body(k, nks):
    AC0 = K3_AC0; AV = K3_AV; WV = K3_WV
    NS = K3_NS
    def reg(b, i):
        j = (b % NS) * 36 + i * 4
        if j < 256:
            return f'a[{j}:{j+3}]'
        return f'v[{136 + j - 256}:{136 + j - 256 + 3}]'
    def ops(b):
        o = []
        for t in range(5):
            def f(t=t):
                k.vmem(f'global_load_dwordx4 {reg(b, 4 + t)}, v{WV+t}, s[18:19]', ('L', b))
            o.append(f)
        for mt in range(4):
            def f(mt=mt):
                k.vmem(f'global_load_dwordx4 {reg(b, mt)}, v{AV+mt}, s[16:17]', ('L', b))
            o.append(f)
        def f():
            k('s_add_u32 s16, s16, 1024')
            k('s_addc_u32 s17, s17, 0')
            k('s_add_u32 s18, s18, 1024')
            k('s_addc_u32 s19, s19, 0')
        o.append(f)
        return o
    for b0 in range(NS - 1):
        for f in ops(b0):
            f()
    k.stamp(1)
    for b in range(nks):
        if b == 2: k.stamp(2)
        if b == 10: k.stamp(3)
        pend = ops(b + NS - 1) if b + NS - 1 < nks else []
        k.wait_vm(('L', b))
        for t in range(5):
            for mt in range(4):
                a = AC0 + (mt * 5 + t) * 4
                cin = '0' if b == 0 else f'v[{a}:{a+3}]'
                k(f'v_mfma_f32_16x16x32_bf16 v[{a}:{a+3}], {reg(b, 4 + t)}, {reg(b, mt)}, {cin}')
                if mt % 2 == 1 and pend:
                    pend.pop(0)()
        while pend:
            pend.pop(0)()
    k('s_nop 7')
    k('s_nop 1')

def gen_k3():
    k = K()
    k.raw(kernel_header('gemm2_kernel'))
    AC0 = K3_AC0; AV = K3_AV; WV = K3_WV
    k(f"""
    s_cmp_ge_u32 s2, 256
    s_cbranch_scc1 L_k3_done
    """)
    k.stamp(0)
    if 'ts' in EXP: k('s_memrealtime s[84:85]')
    k(f"""
    s_load_dwordx2 s[4:5], s[0:1], 0       ; x
    s_load_dwordx2 s[8:9], s[0:1], 16      ; wo
    s_load_dwordx2 s[10:11], s[0:1], 48    ; w_down
    s_load_dwordx2 s[24:25], s[0:1], 56    ; out
    s_load_dwordx2 s[6:7], s[0:1], 72      ; ws
    """)
    xn = 1
    for cand in (1, 2, 4, 8):
        if f'xn{cand}' in EXP: xn = cand
    xm = 8 // xn
    lm = {1:0,2:1,4:2,8:3}
    k(f"""
    s_and_b32 s3, s2, 7
    s_lshr_b32 s15, s2, 3
    s_and_b32 s12, s3, {xm-1}
    s_lshl_b32 s12, s12, {5 - lm[xm]}
    s_and_b32 s13, s15, {32//xm - 1}
    s_add_u32 s12, s12, s13                ; m tile (0..31)
    s_lshr_b32 s13, s3, {lm[xm]}
    s_lshl_b32 s13, s13, {3 - lm[xn]}
    s_lshr_b32 s15, s15, {5 - lm[xm]}
    s_add_u32 s13, s13, s15                ; n tile (0..7)
    s_mul_i32 s13, s13, 160                ; n0*2 bytes
    v_lshrrev_b32 v1, 6, v0
    v_and_b32 v2, 63, v0
    s_nop 0
    v_readfirstlane_b32 s14, v1            ; wave
    v_and_b32 v3, 15, v2                   ; l&15
    v_lshrrev_b32 v4, 4, v2                ; g
    """)
    k("""
    v_lshlrev_b32 v5, 4, v2                ; lane*16
    v_mov_b32 v120, v5
    v_add_u32 v121, 69632, v5
    v_add_u32 v122, 139264, v5
    v_add_u32 v123, 208896, v5
    v_add_u32 v124, 278528, v5
    s_waitcnt lgkmcnt(0)
    """)
    k(f"""
    s_mul_i32 s15, s14, {17*1024}
    s_mul_i32 s22, s12, {4*69632}
    s_add_u32 s22, s22, s15
    s_add_u32 s22, s22, {HF}
    s_add_u32 s16, s6, s22
    s_addc_u32 s17, s7, 0
    s_mul_i32 s22, s13, 2176
    s_add_u32 s22, s22, s15
    s_add_u32 s22, s22, {W3F}
    s_add_u32 s18, s6, s22
    s_addc_u32 s19, s7, 0
    v_mov_b32 v{AV}, v5
    v_add_u32 v{AV+1}, 69632, v5
    v_add_u32 v{AV+2}, {2*69632}, v5
    v_add_u32 v{AV+3}, {3*69632}, v5
    """)
    k3_body(k, 17)
    k.label('L_k3_red')
    k.stamp(4)
    k.vm = []; k.lg = []
    PW = 64 * K3_PSTR
    k('s_lshl_b32 s12, s12, 6                 ; row0')
    for r in range(3):
        k(f"""
        v_add_u32 v6, {256*r}, v0
        v_mul_u32_u24 v7, 6554, v6
        v_lshrrev_b32 v7, 16, v7           ; m
        v_mul_u32_u24 v8, 10, v7
        v_sub_u32 v8, v6, v8               ; c
        v_add_u32 v9, s12, v7
        v_mul_u32_u24 v9, 1280, v9
        v_lshl_add_u32 v9, v8, 4, v9
        v_add_u32 v{96+r}, s13, v9
        v_mul_u32_u24 v9, {K3_PSTR}, v7
        v_lshl_add_u32 v{100+r}, v8, 5, v9
        v_add_u32 v{104+r}, {2*PW}, v{100+r}
        """)
    k('v_cmp_gt_u32 vcc, 128, v0')
    k('s_nop 3')
    k('s_mov_b64 s[26:27], vcc')
    for r in range(2):
        k.vmem(f'global_load_dwordx4 v[{108+4*r}:{111+4*r}], v{96+r}, s[4:5]', 'x')
    k('s_mov_b64 exec, s[26:27]')
    k('s_cbranch_execz L_k3_nox')
    k.vmem(f'global_load_dwordx4 v[116:119], v98, s[4:5]', 'x')
    k.label('L_k3_nox')
    k('s_mov_b64 exec, -1')
    k('s_barrier')
    k(f"""
    s_mul_i32 s22, s14, {PW}
    v_mul_u32_u24 v7, {K3_PSTR}, v3
    v_lshl_add_u32 v7, v4, 4, v7
    v_add_u32 v7, s22, v7
    """)
    for mt in range(4):
        for t in range(5):
            a = AC0 + (mt * 5 + t) * 4
            k.lds(f'ds_write_b128 v7, v[{a}:{a+3}] offset:{mt*16*K3_PSTR + t*64}')
    k.wait_lg_all()
    k('s_barrier')
    k.stamp(5)
    for r in range(3):
        for w in range(4):
            for hf in range(2):
                d = 120 + r * 32 + (w * 2 + hf) * 4
                k.lds(f'ds_read_b128 v[{d}:{d+3}], v{(100 if w < 2 else 104) + r} offset:{(w&1)*PW + hf*16}', ('r', r))
    k.wait_vm_all()
    for r in range(3):
        k.wait_lg(('r', r))
        p0 = 120 + r * 32
        for e in range(0, 8, 2):
            k(f'v_pk_add_f32 v[{p0+e}:{p0+e+1}], v[{p0+e}:{p0+e+1}], v[{p0+8+e}:{p0+9+e}]')
            k(f'v_pk_add_f32 v[{p0+16+e}:{p0+17+e}], v[{p0+16+e}:{p0+17+e}], v[{p0+24+e}:{p0+25+e}]')
        for e in range(0, 8, 2):
            k(f'v_pk_add_f32 v[{p0+e}:{p0+e+1}], v[{p0+e}:{p0+e+1}], v[{p0+16+e}:{p0+17+e}]')
        for h in range(4):
            a0, a1 = p0 + 2 * h, p0 + 2 * h + 1
            xr = 108 + 4 * r + h
            k(f"""
            v_lshlrev_b32 v12, 16, v{xr}
            v_and_b32 v13, 0xffff0000, v{xr}
            v_add_f32 v{a0}, v{a0}, v12
            v_add_f32 v{a1}, v{a1}, v13
            v_cvt_pk_bf16_f32 v{xr}, v{a0}, v{a1}
            """)
        if r == 2:
            k('s_mov_b64 exec, s[26:27]')
            k('s_cbranch_execz L_k3_nost')
        k.vmem(f'global_store_dwordx4 v{96+r}, v[{108+4*r}:{111+4*r}], s[24:25]')
    k.label('L_k3_nost')
    k('s_waitcnt vmcnt(0)')
    k('s_mov_b64 exec, -1')
    k.stamp(6)
    if 'ts' in EXP: k('s_memrealtime s[86:87]')
    k.stamp_flush(9, 6, base=0x3100000)
    k.label('L_k3_done')
    k('s_endpgm')
    return k.text(), kernel_desc('gemm2_kernel', 216 + 256, 100, 216)

HEADER = open('parallel_sum__sliding_block__swiglu_ffn__prompt.s.ref').read().split('; Override launch')[0]

def main(path):
    parts = [gen_k1(), gen_k2(), gen_k3()]
    s = HEADER
    s += f'; @launch kernel=gemm1_kernel grid=(256,1,1) block=(256,1,1) lds={K1_LDS}\n'
    s += f'; @launch kernel=attn_kernel grid=(682,1,1) block=(256,1,1) lds={K2_LDS}\n'
    s += f'; @launch kernel=gemm2_kernel grid=(256,1,1) block=(256,1,1) lds={K3_LDS}\n'
    s += '.amdgcn_target "amdgcn-amd-amdhsa--gfx950"\n.text\n'
    for t, d in parts:
        s += t
    s += '.section .rodata,"a"\n'
    for t, d in parts:
        s += '.p2align 6\n' + d
    open(path, 'w').write(s)

if __name__ == '__main__':
    main(sys.argv[1] if len(sys.argv) > 1 else 'parallel_sum__sliding_block__swiglu_ffn__prompt.s')
```

```python
import sys, os
from asmlib import *
EXP = os.environ.get('EXP', '')

XN = 0x0000000
QF = 0x0400000
KF = 0x0800000
VF = 0x0B00000
HF = 0x1000000
OF = 0x1000000
W3F = 0x1A00000
WS_BYTES = 268435456
LOG2E = 1.4426950408889634

def f32hex(x):
    import struct
    return '0x%08x' % struct.unpack('<I', struct.pack('<f', x))[0]

def ws_srd(k, sbase, sptr):
    k(f'''
    s_mov_b32 s{sbase}, s{sptr}
    s_and_b32 s{sbase+1}, s{sptr+1}, 0xffff
    s_mov_b32 s{sbase+2}, {WS_BYTES}
    s_mov_b32 s{sbase+3}, 0x00020000
    ''')

def gen_ln():
    k = K()
    k.raw(kernel_header('ln_kernel'))
    k('''
    s_cmp_ge_u32 s2, 128
    s_cbranch_scc1 L_ln_done
    s_load_dwordx2 s[4:5], s[0:1], 0
    s_load_dwordx2 s[6:7], s[0:1], 72
    v_lshrrev_b32 v1, 4, v0
    s_lshl_b32 s3, s2, 4
    v_add_u32 v1, s3, v1                  ; row
    v_and_b32 v2, 15, v0                  ; i
    v_lshrrev_b32 v3, 5, v1
    v_mul_u32_u24 v3, 40960, v3
    v_and_b32 v73, 31, v1
    v_lshl_add_u32 v3, v73, 4, v3
    v_lshl_add_u32 v3, v2, 9, v3
    v_mul_u32_u24 v1, 1280, v1
    v_lshl_add_u32 v1, v2, 4, v1
    s_waitcnt lgkmcnt(0)
    ''')
    for c in range(5):
        k(f'global_load_dwordx4 v[{4+4*c}:{7+4*c}], v1, s[4:5] offset:{256*c}')
    k('s_waitcnt vmcnt(0)')
    for j in range(20):
        k(f'v_lshlrev_b32 v{32+2*j}, 16, v{4+j}')
        k(f'v_and_b32 v{33+2*j}, 0xffff0000, v{4+j}')
    for a in range(4):
        k(f'v_add_f32 v{24+a}, v{32+a}, v{36+a}')
    for j in range(8, 40, 4):
        for a in range(4):
            k(f'v_add_f32 v{24+a}, v{24+a}, v{32+j+a}')
    k('''
    v_add_f32 v24, v24, v25
    v_add_f32 v26, v26, v27
    v_add_f32 v24, v24, v26
    ''')
    def dpp_reduce(r):
        for sh in (8, 4, 2, 1):
            k('s_nop 1')
            k(f'v_add_f32_dpp v{r}, v{r}, v{r} row_ror:{sh} row_mask:0xf bank_mask:0xf')
    dpp_reduce(24)
    k(f'v_mul_f32 v24, {f32hex(1.0/640)}, v24')
    for a in range(4):
        k(f'v_sub_f32 v72, v{32+a}, v24')
        k(f'v_mul_f32 v{26+a}, v72, v72')
    for j in range(4, 40):
        k(f'v_sub_f32 v72, v{32+j}, v24')
        k(f'v_fmac_f32 v{26+(j&3)}, v72, v72')
    k('''
    v_add_f32 v26, v26, v27
    v_add_f32 v28, v28, v29
    v_add_f32 v26, v26, v28
    ''')
    dpp_reduce(26)
    k(f'v_mul_f32 v26, {f32hex(1.0/640)}, v26')
    k(f'''
    v_cvt_pk_bf16_f32 v27, v24, v26
    v_lshlrev_b32 v24, 16, v27            ; m_b
    v_and_b32 v26, 0xffff0000, v27        ; var_b
    v_add_f32 v26, {f32hex(1e-5)}, v26
    v_cvt_pk_bf16_f32 v27, v26, v26
    v_lshlrev_b32 v26, 16, v27
    v_sqrt_f32 v26, v26
    s_nop 0
    v_cvt_pk_bf16_f32 v27, v26, v26
    v_lshlrev_b32 v26, 16, v27
    v_rcp_f32 v26, v26
    ''')
    for j in range(20):
        a, b = 32 + 2 * j, 33 + 2 * j
        k(f'''
        v_sub_f32 v{a}, v{a}, v24
        v_sub_f32 v{b}, v{b}, v24
        v_cvt_pk_bf16_f32 v72, v{a}, v{b}
        v_lshlrev_b32 v{a}, 16, v72
        v_and_b32 v{b}, 0xffff0000, v72
        v_mul_f32 v{a}, v{a}, v26
        v_mul_f32 v{b}, v{b}, v26
        v_cvt_pk_bf16_f32 v{4+j}, v{a}, v{b}
        ''')
    for c in range(5):
        k(f'global_store_dwordx4 v3, v[{4+4*c}:{7+4*c}], s[6:7]')
        if c < 4:
            k('v_add_u32 v3, 8192, v3')
    k('s_waitcnt vmcnt(0)')
    k.label('L_ln_done')
    k('s_endpgm')
    return k.text(), kernel_desc('ln_kernel', 80, 16, 80)

K1_NCH = 10
K1_RING = 4
K1_BUF = 20480
K1_AOFF = K1_RING * K1_BUF
K1_CS = K1_AOFF + 65536
K1_LDS = K1_CS + 1024
ST = 0x1F00000
ACC0 = 96
WF0 = 64
WFR = 6
def acc(t, sub):
    return ACC0 + (t * 2 + sub) * 16

def stats_loads(k, ld, vaddr, sx, tag):
    for c in range(5):
        k.vmem(f'global_load_dwordx4 v[{ld+4*c}:{ld+4*c+3}], v{vaddr}, s[{sx}:{sx+1}] offset:{256*c}', tag)

def stats_compute(k, ld, up, tmp):
    t0 = tmp
    for j in range(20):
        k(f'v_lshlrev_b32 v{up[2*j]}, 16, v{ld+j}')
        k(f'v_and_b32 v{up[2*j+1]}, 0xffff0000, v{ld+j}')
    for a in range(4):
        k(f'v_add_f32 v{t0+a}, v{up[a]}, v{up[4+a]}')
    for j in range(8, 40, 4):
        for a in range(4):
            k(f'v_add_f32 v{t0+a}, v{t0+a}, v{up[j+a]}')
    k(f"""
    v_add_f32 v{t0}, v{t0}, v{t0+1}
    v_add_f32 v{t0+2}, v{t0+2}, v{t0+3}
    v_add_f32 v{t0}, v{t0}, v{t0+2}
    """)
    def dpp_reduce(r):
        for sh in (8, 4, 2, 1):
            k('s_nop 1')
            k(f'v_add_f32_dpp v{r}, v{r}, v{r} row_ror:{sh} row_mask:0xf bank_mask:0xf')
    dpp_reduce(t0)
    k(f'v_mul_f32 v{t0}, {f32hex(1.0/640)}, v{t0}')
    for a in range(4):
        k(f'v_sub_f32 v{t0+7}, v{up[a]}, v{t0}')
        k(f'v_mul_f32 v{t0+2+a}, v{t0+7}, v{t0+7}')
    for j in range(4, 40):
        k(f'v_sub_f32 v{t0+7}, v{up[j]}, v{t0}')
        k(f'v_fmac_f32 v{t0+2+(j&3)}, v{t0+7}, v{t0+7}')
    k(f"""
    v_add_f32 v{t0+2}, v{t0+2}, v{t0+3}
    v_add_f32 v{t0+4}, v{t0+4}, v{t0+5}
    v_add_f32 v{t0+2}, v{t0+2}, v{t0+4}
    """)
    dpp_reduce(t0 + 2)
    k(f"""
    v_mul_f32 v{t0+2}, {f32hex(1.0/640)}, v{t0+2}
    v_cvt_pk_bf16_f32 v{t0+3}, v{t0}, v{t0+2}
    v_lshlrev_b32 v{t0}, 16, v{t0+3}
    v_and_b32 v{t0+2}, 0xffff0000, v{t0+3}
    v_add_f32 v{t0+2}, {f32hex(1e-5)}, v{t0+2}
    v_cvt_pk_bf16_f32 v{t0+3}, v{t0+2}, v{t0+2}
    v_lshlrev_b32 v{t0+2}, 16, v{t0+3}
    v_sqrt_f32 v{t0+2}, v{t0+2}
    s_nop 0
    v_cvt_pk_bf16_f32 v{t0+3}, v{t0+2}, v{t0+2}
    v_lshlrev_b32 v{t0+2}, 16, v{t0+3}
    v_rcp_f32 v{t0+1}, v{t0+2}
    s_nop 0
    """)


def stats_stream():
    o = []
    o += ['v_mov_b32 v26, 0', 'v_mov_b32 v27, 0', 'v_mov_b32 v94, 0', 'v_mov_b32 v95, 0']
    for j in range(20):
        a0, a1 = ('v26', 'v27') if j % 2 == 0 else ('v94', 'v95')
        o += [f'v_accvgpr_read_b32 v5, a{64+j}', 'v_lshlrev_b32 v6, 16, v5', 'v_and_b32 v5, 0xffff0000, v5',
              f'v_add_f32 {a0}, {a0}, v6', f'v_add_f32 {a1}, {a1}, v5']
    o += ['v_add_f32 v26, v26, v27', 'v_add_f32 v94, v94, v95', 'v_add_f32 v26, v26, v94']
    for sh in (8, 4, 2, 1):
        o += ['s_nop 1', f'v_add_f32_dpp v26, v26, v26 row_ror:{sh} row_mask:0xf bank_mask:0xf']
    o += [f'v_mul_f32 v26, {f32hex(1.0/640)}, v26', 'v_mov_b32 v27, 0', 'v_mov_b32 v94, 0']
    for j in range(20):
        o += [f'v_accvgpr_read_b32 v5, a{64+j}', 'v_lshlrev_b32 v6, 16, v5', 'v_and_b32 v5, 0xffff0000, v5',
              'v_sub_f32 v6, v6, v26', 'v_sub_f32 v5, v5, v26', 'v_fmac_f32 v27, v6, v6', 'v_fmac_f32 v94, v5, v5']
    o += ['v_add_f32 v27, v27, v94']
    for sh in (8, 4, 2, 1):
        o += ['s_nop 1', f'v_add_f32_dpp v27, v27, v27 row_ror:{sh} row_mask:0xf bank_mask:0xf']
    o += [f'v_mul_f32 v27, {f32hex(1.0/640)}, v27',
          'v_cvt_pk_bf16_f32 v5, v26, v27', 'v_lshlrev_b32 v26, 16, v5', 'v_and_b32 v27, 0xffff0000, v5',
          f'v_add_f32 v27, {f32hex(1e-5)}, v27', 'v_cvt_pk_bf16_f32 v5, v27, v27', 'v_lshlrev_b32 v27, 16, v5',
          'v_sqrt_f32 v27, v27', 's_nop 0', 'v_cvt_pk_bf16_f32 v5, v27, v27', 'v_lshlrev_b32 v27, 16, v5',
          'v_rcp_f32 v27, v27', 's_nop 0']
    return o

def k1_mainloop(k, vmode, qk=False):
    PD = 4
    nfr = K1_NCH * 20
    def frag_read(n):
        c, r = divmod(n, 20)
        s, t = divmod(r, 5)
        buf = c % K1_RING
        base = (28 if buf < 2 else 32) + s
        off = (buf & 1) * K1_BUF + t * (80 if qk else 32)
        if qk and t == 4:
            k(f'v_add_u32 v93, v9, v{base}')
            base = 93
            off = (buf & 1) * K1_BUF
        d = WF0 + (n % WFR) * 4
        k.lds(f'ds_read_b64_tr_b16 v[{d}:{d+1}], v{base} offset:{off}', ('fr', n))
        k.lds(f'ds_read_b64_tr_b16 v[{d+2}:{d+3}], v{base} offset:{off + 4*320}', ('fr', n))
    def AR_ops(c):
        ops = []
        for sub in range(2):
            for s in range(4):
                d = (c % 2) * 32 + (sub * 4 + s) * 4
                def f(d=d, sub=sub, s=s):
                    if not ('noAR' in EXP and c > 1):
                        k.lds(f'ds_read_b128 a[{d}:{d+3}], v{50+s} offset:{(c % 2)*8192 + sub*4096}', ('A', c))
                ops.append(f)
        return ops
    def AD_ops(c):
        ops = []
        for j in range(8):
            def f(j=j):
                k(f's_add_u32 m0, s34, {(c % 2)*8192 + j*1024}')
                k('s_nop 0')
                if not ('noAD' in EXP and c > 1):
                    k.vmem(f'global_load_lds_dwordx4 v{56+j}, s[4:5]', ('AD', c))
                if j == 7:
                    k('s_add_u32 s4, s4, 128')
                    k('s_addc_u32 s5, s5, 0')
            ops.append(f)
        return ops
    def D_ops(c):
        ops = []
        buf = c % K1_RING
        for j in range(5):
            def f(j=j):
                k(f's_add_u32 m0, s21, {buf*K1_BUF + j*1024}')
                k('s_nop 0')
                if not ('noWD' in EXP and c > 2):
                    k.vmem(f'global_load_lds_dwordx4 v[{40+2*j}:{41+2*j}], off', ('D', c))
                k(f'v_add_co_u32 v{40+2*j}, vcc, s20, v{40+2*j}')
                k(f'v_addc_co_u32 v{41+2*j}, vcc, 0, v{41+2*j}, vcc')
            ops.append(f)
        return ops
    return frag_read, AR_ops, AD_ops, D_ops, PD, nfr

def k1_loop(k, vmode, qk=False):
    frag_read, AR_ops, AD_ops, D_ops, PD, nfr = k1_mainloop(k, vmode, qk)
    for r in range(10, 25):
        k(f'v_mov_b32 v{r}, 0')
    k('v_mov_b32 v9, v6')
    k('v_mov_b32 v8, 0x3f803f80')
    k.wait_vm(('D', 0))
    k('s_barrier')
    k.stamp(1)
    k.wait_vm(('AD', 0))
    for f in AR_ops(0):
        f()
    for n in range(PD):
        frag_read(n)
    k.wait_lg(('A', 0))
    vstream = stats_stream()
    for c in range(K1_NCH):
        if c == 1 and 'tsp' not in EXP: k.stamp(2)
        if c == 5 and 'tsx' not in EXP: k.stamp(3)
        sched = {i: [] for i in range(40)}
        bst = 14 if c == 0 else 4
        if c == 0:
            for i, f in enumerate(D_ops(1) + AD_ops(1) + D_ops(2) + AD_ops(2)):
                sched[i].append(f)
            for i, f in enumerate(AR_ops(1)):
                sched[29 + i].append(f)
            for i, f in enumerate(D_ops(3)):
                sched[30 + 2 * i].append(f)
        else:
            if c == 1:
                for i, f in enumerate(AD_ops(3)):
                    sched[1 + i].append(f)
            if c + 1 < K1_NCH:
                for i, f in enumerate(AR_ops(c + 1)):
                    sched[10 + i].append(f)
            if c + 3 < K1_NCH:
                for i, f in enumerate(D_ops(c + 3)):
                    sched[9 + 3 * i].append(f)
                for i, f in enumerate(AD_ops(c + 3)):
                    sched[23 + 2 * i].append(f)
        for s in range(4):
            for t in range(5):
                n = c * 20 + s * 5 + t
                st = s * 5 + t
                if n + PD < nfr:
                    frag_read(n + PD)
                if st == 0:
                    k.wait_lg(('A', c))
                if st == bst and c + 1 < K1_NCH:
                    k.wait_vm(('AD', c + 1))
                    k.wait_vm(('D', c + 1))
                    if c == 4:
                        k.wait_vm('ststore')
                    k('s_barrier')
                    if c == 4:
                        lb = k.newlabel('L_flag')
                        k(f"""
                        s_cmp_lg_u32 s14, 0
                        s_cbranch_scc1 {lb}
                        v_mov_b32 v36, s13
                        v_mov_b32 v37, 1
                        s_mov_b64 exec, 1
                        global_store_byte v36, v37, s[36:37] sc0 sc1
                        s_mov_b64 exec, -1
                        """)
                        k.label(lb)
                if st == 11 and c + 3 < K1_NCH and c > 0:
                    k.wait_lg(('A', c + 1))
                if c == 1 and st == 5:
                    k.wait_vm('st')
                if c == 3 and st == 0:
                    assert not vstream
                    k('s_mov_b32 exec_lo, 0x00010001')
                    k('s_mov_b32 exec_hi, 0x00010001')
                    k.vmem('global_store_dwordx2 v7, v[26:27], s[42:43] sc0 sc1', 'ststore')
                    k('s_mov_b64 exec, -1')
                if c == 7 and st == 6:
                    k('v_and_b32 v36, 7, v2')
                    k('v_lshlrev_b32 v36, 2, v36')
                    k.vmem('global_load_dword v25, v36, s[36:37] sc0 sc1', 'flag')
                if c == 8 and st == 6:
                    k.wait_vm('flag')
                    k('v_cmp_ne_u32 vcc, ' + ('0x02020202' if 'forcefb' in EXP or 'forcepoll' in EXP else '0x01010101') + ', v25')
                    k('v_lshlrev_b32 v36, 3, v3')
                    k('s_nop 2')
                    k('s_cmp_eq_u64 vcc, 0')
                    k('s_cselect_b32 s48, 1, 0')
                    lb = k.newlabel('L_nopre')
                    k(f's_cbranch_scc0 {lb}')
                    k('global_load_dwordx2 v[94:95], v36, s[42:43] sc0 sc1')
                    k('global_load_dwordx2 v[26:27], v36, s[42:43] offset:256 sc0 sc1')
                    k.label(lb)
                k.wait_lg(('fr', n))
                wf = WF0 + (n % WFR) * 4
                for sub in range(2):
                    xa = (c % 2) * 32 + (sub * 4 + s) * 4
                    a = acc(t, sub)
                    cin = '0' if (c == 0 and s == 0) else f'v[{a}:{a+15}]'
                    if not vmode:
                        k(f'v_mfma_f32_32x32x16_bf16 v[{a}:{a+15}], v[{wf}:{wf+3}], a[{xa}:{xa+3}], {cin}')
                    else:
                        k(f'v_mfma_f32_32x32x16_bf16 v[{a}:{a+15}], a[{xa}:{xa+3}], v[{wf}:{wf+3}], {cin}')
                    if 'noCS' not in EXP:
                        CSF = [0, 1, 2, 3, 1]
                        for back in range(2):
                            st2 = st - back
                            if st2 < 0:
                                continue
                            s2_, t2 = divmod(st2, 5)
                            if CSF[t2] == s2_:
                                wf2 = WF0 + ((c * 20 + st2) % WFR) * 4
                                r = wf2 + 2 * back + sub
                                accs = [(88 + t2, 10 + t2), (15 + t2, 20 + t2)][sub]
                                k(f'v_lshlrev_b32 v36, 16, v{r}')
                                k(f'v_and_b32 v37, 0xffff0000, v{r}')
                                k(f'v_add_f32 v{accs[0]}, v{accs[0]}, v36')
                                k(f'v_add_f32 v{accs[1]}, v{accs[1]}, v37')
                    for f in sched[2 * st + sub]:
                        f()
                    if (c == 1 and st >= 5) or (c == 2 and st >= 5):
                        for _ in range(5):
                            if vstream:
                                k(vstream.pop(0))
    if 'tsx' in EXP and 'tsp' not in EXP: k.stamp(3)
    for t in range(5):
        k(f'v_add_f32 v{88+t}, v{88+t}, v{10+t}')
        k(f'v_add_f32 v{15+t}, v{15+t}, v{20+t}')
    for t in range(5):
        k(f'v_add_f32 v{88+t}, v{88+t}, v{15+t}')
    k(f"""
    v_lshlrev_b32 v5, 2, v2
    v_add_u32 v5, s34, v5                  ; own x staging area (free now): [t][64 lanes] floats
    """)
    for t in range(5):
        k.lds(f'ds_write_b32 v5, v{88+t} offset:{t*256}')
    k.wait_lg_all()
    k('s_barrier')
    k(f"""
    v_lshrrev_b32 v5, 5, v0
    v_lshlrev_b32 v5, 8, v5
    v_and_b32 v6, 31, v0
    v_lshl_add_u32 v5, v6, 2, v5
    v_add_u32 v5, {K1_AOFF}, v5
    """)
    for w in range(4):
        k.lds(f'ds_read2_b32 v[{10+2*w}:{11+2*w}], v5 offset0:{w*320 % 256} offset1:{(w*320+32) % 256}' if False else f'ds_read_b32 v{10+2*w}, v5 offset:{w*16384}')
        k.lds(f'ds_read_b32 v{11+2*w}, v5 offset:{w*16384 + 128}')
    k.wait_lg_all()
    k(f"""
    v_add_f32 v10, v10, v11
    v_add_f32 v12, v12, v13
    v_add_f32 v14, v14, v15
    v_add_f32 v16, v16, v17
    v_add_f32 v10, v10, v12
    v_add_f32 v14, v14, v16
    v_add_f32 v10, v10, v14
    v_lshlrev_b32 v5, 2, v0
    v_add_u32 v5, {K1_CS}, v5
    ds_write_b32 v5, v10
    s_waitcnt lgkmcnt(0)
    s_barrier
    """)
    if 'tsp' not in EXP: k.stamp(4)

def k1_get_stats(k, tagn):
    lp = f'L_k1_poll{tagn}'; ok = f'L_k1_ok{tagn}'; fb = f'L_k1_fb{tagn}'
    k(f"""
    s_cmp_eq_u32 s48, 1
    s_cbranch_scc1 L_k1_fast{tagn}
    s_mov_b32 s40, {4 if 'forcefb' in EXP else 4096}
    v_and_b32 v5, 7, v2
    v_lshlrev_b32 v5, 2, v5
    s_mov_b32 s41, {'0x02020202' if 'forcefb' in EXP else '0x01010101'}
    """)
    k.label(lp)
    k(f"""
    global_load_dword v6, v5, s[36:37] sc0 sc1
    s_waitcnt vmcnt(0)
    v_cmp_ne_u32 vcc, s41, v6
    s_nop 3
    s_cmp_eq_u64 vcc, 0
    s_cbranch_scc1 {ok}
    s_sleep 4
    s_sub_u32 s40, s40, 1
    s_cmp_lg_u32 s40, 0
    s_cbranch_scc1 {lp}
    ; ---- fallback: compute stats of this wave's 64 rows here (16 passes of 4 rows)
    v_lshrrev_b32 v5, 4, v2
    v_add_u32 v5, s22, v5                  ; row
    v_lshlrev_b32 v7, 3, v5
    v_mul_u32_u24 v5, 1280, v5
    v_and_b32 v6, 15, v2
    v_lshl_add_u32 v5, v6, 4, v5
    s_mov_b32 s40, 16
    """)
    k.label(fb)
    sv = k.vm; k.vm = []
    stats_loads(k, 8, 5, 38, 'st')
    k.wait_vm_all()
    up = list(range(64, 88)) + list(range(40, 56))
    stats_compute(k, 8, up, 28)
    k(f"""
    s_mov_b32 exec_lo, 0x00010001
    s_mov_b32 exec_hi, 0x00010001
    global_store_dwordx2 v7, v[28:29], s[42:43] sc0 sc1
    s_mov_b64 exec, -1
    v_add_u32 v5, 5120, v5
    v_add_u32 v7, 32, v7
    s_sub_u32 s40, s40, 1
    s_cmp_lg_u32 s40, 0
    s_cbranch_scc1 {fb}
    s_waitcnt vmcnt(0)
    """)
    k.label(ok)
    k(f"""
    v_lshlrev_b32 v5, 3, v3
    global_load_dwordx2 v[94:95], v5, s[42:43] sc0 sc1
    global_load_dwordx2 v[26:27], v5, s[42:43] offset:256 sc0 sc1
    """)
    k.label(f'L_k1_fast{tagn}')
    k('s_waitcnt vmcnt(0)')
    k.vm = []

def gen_k1():
    k = K()
    k.raw(kernel_header('gemm1_kernel'))
    k("""
    s_cmp_ge_u32 s2, 256
    s_cbranch_scc1 L_k1_done
    """)
    k.stamp(0)
    if 'ts' in EXP: k('s_memrealtime s[84:85]')
    k(f"""
    s_load_dwordx4 s[4:7], s[0:1], 0       ; x, wqkv
    s_load_dwordx4 s[24:27], s[0:1], 32
    s_load_dwordx4 s[44:47], s[0:1], 64
    s_and_b32 s13, s2, 7
    s_lshl_b32 s13, s13, 2
    s_lshr_b32 s3, s2, 3
    s_and_b32 s3, s3, 3
    s_add_u32 s13, s13, s3                 ; ng
    s_lshr_b32 s12, s2, 5                  ; mb
    v_lshrrev_b32 v1, 6, v0
    v_and_b32 v2, 63, v0                   ; lane
    s_nop 0
    v_readfirstlane_b32 s14, v1            ; wave
    s_mul_i32 s21, s14, 5120
    s_lshl_b32 s34, s14, 14
    s_add_u32 s34, s34, {K1_AOFF}
    s_lshl_b32 s22, s12, 8
    s_lshl_b32 s23, s14, 6
    s_add_u32 s22, s22, s23                ; row0
    v_and_b32 v3, 31, v2
    v_add_u32 v3, s22, v3
    v_lshrrev_b32 v4, 5, v2                ; h
    ; stats duty rows: mb*256 + ng*8 + wave*4 + (lane>>4)
    s_lshl_b32 s23, s12, 8
    s_lshl_b32 s35, s13, 3
    s_add_u32 s23, s23, s35
    s_and_b32 s35, s14, 1
    s_lshl_b32 s35, s35, 2
    s_add_u32 s23, s23, s35
    v_lshrrev_b32 v5, 4, v2
    v_add_u32 v5, s23, v5
    v_lshlrev_b32 v7, 3, v5
    v_mul_u32_u24 v5, 1280, v5
    v_and_b32 v6, 15, v2
    v_lshl_add_u32 v5, v6, 4, v5
    s_waitcnt lgkmcnt(0)
    s_mov_b32 s16, s6
    s_mov_b32 s17, s7                      ; wqkv
    s_mov_b32 s6, s46
    s_mov_b32 s7, s47                      ; ws
    s_mov_b32 s38, s4
    s_mov_b32 s39, s5
    s_lshl_b32 s35, s12, 5
    s_add_u32 s36, s44, s35
    s_addc_u32 s37, s45, 0
    s_add_u32 s42, s6, {ST}
    s_addc_u32 s43, s7, 0
    s_mul_i32 s23, s14, 320
    v_add_u32 v36, s23, v2                 ; p for j=0
    s_cmp_ge_u32 s13, 12
    s_cbranch_scc1 L_k1_ffn_addr
    s_mul_i32 s23, s13, 320
    s_add_u32 s16, s16, s23
    s_addc_u32 s17, s17, 0
    s_mov_b32 s20, 245760
    """)
    for j in range(5):
        k(f"""
        v_add_u32 v37, {64*j}, v36
        v_mul_u32_u24 v38, 3277, v37
        v_lshrrev_b32 v38, 16, v38
        v_mul_u32_u24 v39, 20, v38
        v_sub_u32 v39, v37, v39
        v_mul_u32_u24 v38, 3840, v38
        v_lshl_add_u32 v38, v39, 4, v38
        v_mov_b32 v{41+2*j}, s17
        v_add_co_u32 v{40+2*j}, vcc, s16, v38
        v_addc_co_u32 v{41+2*j}, vcc, 0, v{41+2*j}, vcc
        """)
    k('s_branch L_k1_addr_done')
    k.label('L_k1_ffn_addr')
    k("""
    s_sub_u32 s28, s13, 12
    s_mul_i32 s29, s28, 5
    s_lshl_b32 s30, s28, 2
    s_add_u32 s30, s30, 15
    s_cmp_ge_u32 s28, 16
    s_cselect_b32 s29, s30, s29
    s_cselect_b32 s31, 1, 0
    s_lshl_b32 s29, s29, 5
    s_add_u32 s24, s24, s29
    s_addc_u32 s25, s25, 0
    s_add_u32 s26, s26, s29
    s_addc_u32 s27, s27, 0
    s_sub_u32 s26, s26, 160
    s_subb_u32 s27, s27, 0
    s_mov_b32 s20, 196608
    v_mov_b32 v32, s24
    v_mov_b32 v33, s25
    v_mov_b32 v34, s26
    v_mov_b32 v35, s27
    """)
    for j in range(5):
        k(f"""
        v_add_u32 v37, {64*j}, v36
        v_mul_u32_u24 v38, 3277, v37
        v_lshrrev_b32 v38, 16, v38
        v_mul_u32_u24 v39, 20, v38
        v_sub_u32 v39, v37, v39
        v_mul_u32_u24 v38, 3072, v38
        v_lshl_add_u32 v38, v39, 4, v38
        v_cmp_le_u32 vcc, 10, v39
        s_nop 1
        v_cndmask_b32 v37, v32, v34, vcc
        v_cndmask_b32 v{41+2*j}, v33, v35, vcc
        v_add_co_u32 v{40+2*j}, vcc, v37, v38
        v_addc_co_u32 v{41+2*j}, vcc, 0, v{41+2*j}, vcc
        """)
    k.label('L_k1_addr_done')
    frag_read, AR_ops, AD_ops, D_ops, PD, nfr = k1_mainloop(k, False)
    if 'tsp' in EXP: k.stamp(2)
    for f in D_ops(0):
        f()
    k(f"""
    ; A DMA source offsets: (row0 + 8j + (l>>3))*1280 + ((l&7) ^ ((4j + (l>>4))&7))*16
    v_lshrrev_b32 v28, 3, v2
    v_add_u32 v28, s22, v28
    v_mul_u32_u24 v28, 1280, v28
    v_and_b32 v29, 7, v2
    v_lshrrev_b32 v30, 4, v2
    v_xor_b32 v29, v29, v30
    v_lshl_add_u32 v30, v29, 4, v28        ; j even
    v_xor_b32 v29, 4, v29
    v_lshl_add_u32 v31, v29, 4, v28        ; j odd
    """)
    for j in range(8):
        k(f'v_add_u32 v{56+j}, {10240*j}, v{31 if j & 1 else 30}')
    for f in AD_ops(0):
        f()
    for c5 in range(5):
        k.vmem(f'global_load_dwordx4 a[{64+4*c5}:{67+4*c5}], v5, s[38:39] offset:{256*c5}', 'st')
    if 'tsp' in EXP: k.stamp(3)
    ws_srd(k, 8, 6)
    k(f"""
    v_and_b32 v28, 31, v2
    v_lshrrev_b32 v29, 1, v28
    v_and_b32 v29, 7, v29
    v_lshlrev_b32 v28, 7, v28
    v_add_u32 v28, s34, v28
    v_xor_b32 v30, v4, v29
    s_lshl_b32 s23, s14, 1
    s_and_b32 s35, s23, 6
    v_xor_b32 v31, s35, v30
    v_lshl_add_u32 v50, v31, 4, v28
    s_add_u32 s23, s23, 2
    s_and_b32 s35, s23, 6
    v_xor_b32 v31, s35, v30
    v_lshl_add_u32 v51, v31, 4, v28
    s_add_u32 s23, s23, 2
    s_and_b32 s35, s23, 6
    v_xor_b32 v31, s35, v30
    v_lshl_add_u32 v52, v31, 4, v28
    s_add_u32 s23, s23, 2
    s_and_b32 s35, s23, 6
    v_xor_b32 v31, s35, v30
    v_lshl_add_u32 v53, v31, 4, v28
    v_mul_u32_u24 v54, 2560, v4
    v_and_b32 v28, 15, v2
    v_lshrrev_b32 v28, 2, v28
    v_mul_u32_u24 v28, 320, v28
    v_add_u32 v54, v54, v28
    v_lshrrev_b32 v28, 4, v2
    v_and_b32 v28, 1, v28
    s_cmp_lt_u32 s13, 8
    s_cselect_b32 s23, 40, 160
    v_mul_u32_u24 v29, s23, v28
    v_add_u32 v54, v54, v29
    v_mul_u32_u24 v29, 120, v28
    v_and_b32 v28, 3, v2
    v_lshl_add_u32 v54, v28, 3, v54
    v_lshl_add_u32 v29, v28, 5, v29
    v_add_u32 v6, 32, v29
    v_add_u32 v55, 40960, v54
    v_mov_b32 v88, 0
    v_mov_b32 v89, 0
    v_mov_b32 v90, 0
    v_mov_b32 v91, 0
    v_mov_b32 v92, 0
    s_mov_b32 s48, 0
    """)
    k(f"""
    s_cmp_lg_u32 s14, 3
    s_cbranch_scc1 L_k1_nozero
    v_lshlrev_b32 v28, 4, v2
    v_add_u32 v28, {K1_CS}, v28
    v_mov_b32 v32, 0
    v_mov_b32 v33, 0
    v_mov_b32 v34, 0
    v_mov_b32 v35, 0
    ds_write_b128 v28, v[32:35]
    s_waitcnt lgkmcnt(0)
    """)
    k.label('L_k1_nozero')
    for sc in range(4):
        k(f"""
        s_add_u32 s23, s14, {sc}
        s_and_b32 s23, s23, 3
        s_mul_i32 s23, s23, 5120
        v_add_u32 v{28+sc}, s23, v54
        v_add_u32 v{32+sc}, s23, v55
        """)
    k("""
    s_cmp_ge_u32 s13, 12
    s_cbranch_scc1 L_k1_main_n
    s_cmp_ge_u32 s13, 8
    s_cbranch_scc1 L_k1_main_v
    """)
    vm0 = list(k.vm)
    def cs(t, q):
        i = t * 4 + q
        if i < 12: return 40 + i * 4
        i -= 12
        if i < 7: return 12 + i * 4
        return 88
    def prep(tagn):
        k1_get_stats(k, tagn)
        k(f"""
        v_mov_b32 v8, v94
        v_mov_b32 v9, v95
        v_mov_b32 v10, v26
        v_mov_b32 v11, v27
        v_lshlrev_b32 v5, 4, v4                ; h*16 bytes
        v_add_u32 v5, {K1_CS}, v5
        """)
        for t in range(5):
            for q in range(4):
                r = (q >> 1) * 16 + (q & 1) * 8
                k.lds(f'ds_read_b128 v[{cs(t,q)}:{cs(t,q)+3}], v5 offset:{(t*32 + r)*4}', 'cs')
        k.wait_lg_all()
    def correct(t, sub):
        a = acc(t, sub)
        for q in range(4):
            for i in range(0, 4, 2):
                r0 = a + 4 * q + i
                k(f'v_pk_fma_f32 v[{r0}:{r0+1}], v[{8+2*sub}:{9+2*sub}], v[{cs(t,q)+i}:{cs(t,q)+i+1}], v[{r0}:{r0+1}] op_sel:[0,0,0] op_sel_hi:[0,1,1] neg_lo:[1,0,0] neg_hi:[1,0,0]')
                k(f'v_pk_mul_f32 v[{r0}:{r0+1}], v[{r0}:{r0+1}], v[{8+2*sub}:{9+2*sub}] op_sel:[0,1] op_sel_hi:[1,1]')
    k1_loop(k, False, qk=True)
    prep(0)
    k(f"""
    s_mov_b32 s28, {QF}
    s_mov_b32 s29, {KF}
    s_cmp_ge_u32 s13, 4
    s_cselect_b32 s28, s29, s28
    s_and_b32 s29, s13, 3
    s_mul_i32 s29, s29, {8*98304}
    s_add_u32 s28, s28, s29
    v_lshrrev_b32 v5, 4, v3
    v_mul_u32_u24 v5, 768, v5
    v_and_b32 v6, 15, v3
    v_lshl_add_u32 v5, v6, 4, v5           ; keypart
    v_lshl_add_u32 v6, v4, 8, v5           ; + hh*256
    v_mul_u32_u24 v7, 98304, v4
    v_add_u32 v7, v7, v5                   ; + h*98304
    """)
    for t in range(5):
        for sub in range(2):
            correct(t, sub)
            a = acc(t, sub)
            if t < 4:
                for hp in range(2):
                    d = a + 8 * hp
                    k(f'v_cvt_pk_bf16_f32 v{d}, v{d}, v{d+1}')
                    k(f'v_cvt_pk_bf16_f32 v{d+1}, v{d+2}, v{d+3}')
                    k(f'v_cvt_pk_bf16_f32 v{d+2}, v{d+4}, v{d+5}')
                    k(f'v_cvt_pk_bf16_f32 v{d+3}, v{d+6}, v{d+7}')
                    k(f's_add_u32 s29, s28, {(2*t+hp)*98304}')
                    k('s_nop 0')
                    k(f'v_permlane32_swap_b32 v{d}, v{d+2}')
                    k(f'v_permlane32_swap_b32 v{d+1}, v{d+3}')
                    k.vmem(f'buffer_store_dwordx4 v[{d}:{d+3}], v6, s[8:11], s29 offen offset:{sub*1536}')
            else:
                for q in range(4):
                    d = a + 4 * q
                    k(f'v_cvt_pk_bf16_f32 v{d}, v{d}, v{d+1}')
                    k(f'v_cvt_pk_bf16_f32 v{d+1}, v{d+2}, v{d+3}')
                    k(f'v_mov_b32 v{d+2}, 0')
                    k(f'v_mov_b32 v{d+3}, 0')
                    k(f's_add_u32 s29, s28, {2*q*98304}')
                    k.vmem(f'buffer_store_dwordx4 v[{d}:{d+3}], v7, s[8:11], s29 offen offset:{sub*1536 + 512}')
    k('s_branch L_k1_end')
    k.label('L_k1_main_n')
    k.vm = list(vm0); k.lg = []
    k1_loop(k, False)
    prep(2)
    k(f"""
    s_lshl_b32 s28, s29, 4
    s_add_u32 s28, s28, {HF + 20*1024}
    s_add_u32 s30, s28, {2*69632}
    v_lshrrev_b32 v5, 4, v3
    v_mul_u32_u24 v5, 69632, v5
    v_and_b32 v6, 15, v3
    v_lshl_add_u32 v5, v6, 4, v5
    v_lshl_add_u32 v5, v4, 8, v5
    s_mov_b32 s33, {f32hex(-LOG2E)}
    """)
    cnt = 0
    for t in range(5):
        if t == 0:
            k("""
            s_cmp_lg_u32 s31, 0
            s_cbranch_scc1 L_k1_ffn_skip0
            """)
        for sub in range(2):
            correct(t, sub)
            a = acc(t, sub)
            d = a
            cnt += 1
            for i in range(0, 8, 2):
                k(f'v_pk_mul_f32 v[{a+8+i}:{a+9+i}], v[{a+i}:{a+i+1}], v[{a+8+i}:{a+9+i}]')
            for i in range(8):
                k(f'v_mul_f32 v{a+i}, s33, v{a+i}')
            for i in range(8):
                k(f'v_exp_f32 v{a+i}, v{a+i}')
            k('s_nop 0')
            for i in range(8):
                k(f'v_add_f32 v{a+i}, 1.0, v{a+i}')
            for i in range(8):
                k(f'v_rcp_f32 v{a+i}, v{a+i}')
            k('s_nop 0')
            for i in range(0, 8, 2):
                k(f'v_pk_mul_f32 v[{a+8+i}:{a+9+i}], v[{a+i}:{a+i+1}], v[{a+8+i}:{a+9+i}]')
            for pr in range(4):
                k(f'v_cvt_pk_bf16_f32 v{d+pr}, v{a+8+2*pr}, v{a+9+2*pr}')
            k('s_nop 1')
            k(f'v_permlane32_swap_b32 v{d}, v{d+2}')
            k(f'v_permlane32_swap_b32 v{d+1}, v{d+3}')
            so = 's30' if sub else 's28'
            k.vmem(f'buffer_store_dwordx4 v[{d}:{d+3}], v5, s[8:11], {so} offen offset:{t*512}')
        if t == 0:
            k.label('L_k1_ffn_skip0')
    k('s_branch L_k1_end')
    k.label('L_k1_main_v')
    k.vm = list(vm0); k.lg = []
    k1_loop(k, True)
    k1_get_stats(k, 1)
    k(f"""
    s_lshl_b32 s29, s22, 3
    v_lshlrev_b32 v5, 5, v4
    v_add_u32 v5, s29, v5
    v_and_b32 v6, 31, v2
    v_lshlrev_b32 v6, 2, v6
    v_add_u32 v6, {K1_CS}, v6
    """)
    for sub in range(2):
        for q in range(4):
            d = 24 + (sub * 4 + q) * 8
            k(f'global_load_dwordx4 v[{d}:{d+3}], v5, s[42:43] offset:{sub*256 + q*64} sc0 sc1')
            k(f'global_load_dwordx4 v[{d+4}:{d+7}], v5, s[42:43] offset:{sub*256 + q*64 + 16} sc0 sc1')
    for t in range(5):
        k(f'ds_read_b32 v{88+t}, v6 offset:{t*128}')
    k('s_waitcnt vmcnt(0) lgkmcnt(0)')
    for t in range(5):
        for sub in range(2):
            a = acc(t, sub)
            for q in range(4):
                for i in range(4):
                    st = 24 + (sub * 4 + q) * 8 + 2 * i
                    k(f'v_fma_f32 v{a+4*q+i}, -v{st}, v{88+t}, v{a+4*q+i}')
                    k(f'v_mul_f32 v{a+4*q+i}, v{a+4*q+i}, v{st+1}')
    k(f"""
    s_sub_u32 s28, s13, 8
    s_mul_i32 s28, s28, {8*81920}
    s_lshr_b32 s29, s22, 5
    s_mul_i32 s29, s29, 1280
    s_add_u32 s28, s28, s29
    s_add_u32 s28, s28, {VF}
    v_and_b32 v5, 15, v2
    v_lshrrev_b32 v6, 4, v2
    v_and_b32 v6, 1, v6
    v_mul_u32_u24 v6, 80, v6
    v_add_u32 v5, v5, v6
    v_mov_b32 v20, 256
    v_mov_b32 v21, 64
    """)
    cnt = 0
    for t in range(5):
        k(f"""
        v_add_u32 v6, {16*t}, v5
        v_mul_u32_u24 v7, 3277, v6
        v_lshrrev_b32 v7, 16, v7
        v_mul_u32_u24 v16, 20, v7
        v_sub_u32 v6, v6, v16
        v_mul_u32_u24 v7, 81920, v7
        v_lshlrev_b32 v16, 4, v6
        v_add_u32 v17, 768, v16
        v_cmp_gt_u32 vcc, 16, v6
        s_nop 1
        v_cndmask_b32 v16, v17, v16, vcc
        v_cndmask_b32 v17, v21, v20, vcc
        v_add_u32 v7, v7, v16
        v_mad_u32_u24 v18, v17, v4, v7
        v_lshl_add_u32 v19, v17, 1, v18
        """)
        for sub in range(2):
            a = acc(t, sub)
            for q in range(2):
                d = 24 + (cnt % 4) * 4
                cnt += 1
                k(f'v_cvt_pk_bf16_f32 v{d}, v{a+4*q}, v{a+4*q+1}')
                k(f'v_cvt_pk_bf16_f32 v{d+1}, v{a+4*q+2}, v{a+4*q+3}')
                k(f'v_cvt_pk_bf16_f32 v{d+2}, v{a+4*q+8}, v{a+4*q+9}')
                k(f'v_cvt_pk_bf16_f32 v{d+3}, v{a+4*q+10}, v{a+4*q+11}')
                k.vmem(f'buffer_store_dwordx4 v[{d}:{d+3}], v{18 + q}, s[8:11], s28 offen offset:{sub*1280}')
    k.label('L_k1_end')
    k.stamp(5)
    k('s_waitcnt vmcnt(0)')
    k.stamp(6)
    if 'ts' in EXP: k('s_memrealtime s[86:87]')
    k.stamp_flush(9, 6)
    k.label('L_k1_done')
    k('s_endpgm')
    return k.text(), kernel_desc('gemm1_kernel', 256 + 96, 100, 256)

K2_VOFF = 24576
K2_ROFF = K2_VOFF + 15360 + 1024
K2_LDS = K2_ROFF + 16384
def gen_k2():
    k = K()
    k.raw(kernel_header('attn_kernel'))
    S0 = 64
    def S(a, kt):
        return S0 + (a * 18 + kt) * 4
    KF0 = 32
    QR = 48
    VF0 = 208
    OA = 240
    k(f'''
    s_cmp_ge_u32 s2, 512
    s_cbranch_scc1 L_k2_done
    ''')
    k.stamp(0)
    if 'ts' in EXP: k('s_memrealtime s[84:85]')
    k(f'''
    s_load_dwordx2 s[6:7], s[0:1], 72
    s_load_dwordx2 s[50:51], s[0:1], 16    ; wo
    s_load_dwordx2 s[52:53], s[0:1], 48    ; w_down
    s_and_b32 s12, s2, 7
    s_lshl_b32 s12, s12, 2
    s_lshr_b32 s13, s2, 7
    s_add_u32 s12, s12, s13                ; head
    s_lshr_b32 s13, s2, 3
    s_and_b32 s13, s13, 15
    s_lshl_b32 s13, s13, 7                 ; q0
    v_lshrrev_b32 v1, 6, v0
    v_and_b32 v2, 63, v0
    s_nop 0
    v_readfirstlane_b32 s14, v1            ; wave
    v_lshlrev_b32 v3, 4, v2                ; lane*16
    s_lshr_b32 s15, s13, 4
    s_mul_i32 s16, s14, 6
    s_add_u32 s15, s15, s16
    s_sub_u32 s15, s15, 16
    s_mul_i32 s15, s15, 768
    s_mul_i32 s16, s12, 98304
    s_add_u32 s15, s15, s16
    s_add_u32 s15, s15, {KF}
    s_mul_i32 s17, s14, 6144
    s_lshr_b32 s20, s13, 5
    s_sub_u32 s20, s20, 8
    s_mul_i32 s20, s20, 1280
    s_mul_i32 s21, s12, 81920
    s_add_u32 s20, s20, s21
    s_lshl_b32 s21, s14, 12
    s_add_u32 s20, s20, s21
    s_add_u32 s20, s20, {VF}
    s_add_u32 s21, s21, {K2_VOFF}
    v_mov_b32 v{QR}, 0
    v_mov_b32 v{QR+1}, 0
    v_mov_b32 v{QR+2}, 0
    v_mov_b32 v{QR+3}, 0
    v_mov_b32 v{QR+4}, 0
    v_mov_b32 v{QR+5}, 0
    v_mov_b32 v{QR+6}, 0
    v_mov_b32 v{QR+7}, 0
    s_waitcnt lgkmcnt(0)
    s_add_u32 s18, s6, s15
    s_addc_u32 s19, s7, 0
    s_add_u32 s22, s6, s20
    s_addc_u32 s23, s7, 0
    s_mov_b32 m0, s21
    s_nop 0
    ''')
    for j in range(3):
        k.vmem(f'global_load_lds_dwordx4 v3, s[22:23] offset:{j*1024}', 'dma')
    lb = k.newlabel('L_k2_v3')
    k('s_cmp_eq_u32 s14, 3')
    k(f's_cbranch_scc1 {lb}')
    k(f'global_load_lds_dwordx4 v3, s[22:23] offset:3072')
    k.label(lb)
    k('s_mov_b32 exec_hi, 0xffff')
    for j in range(6):
        k(f's_add_u32 m0, s17, {j*1024}')
        k('s_nop 0')
        k.vmem(f'global_load_lds_dwordx4 v3, s[18:19]', 'dma')
        k('s_add_u32 s18, s18, 768')
        k('s_addc_u32 s19, s19, 0')
    k(f'''
    s_lshl_b32 s24, s14, 5                 ; 32w
    s_add_u32 s25, s13, s24                ; q0 + 32w
    s_lshr_b32 s26, s25, 4
    s_mul_i32 s26, s26, 768
    s_mul_i32 s27, s12, 98304
    s_add_u32 s26, s26, s27
    s_add_u32 s26, s26, {QF}
    s_add_u32 s18, s6, s26
    s_addc_u32 s19, s7, 0
    ''')
    k.vmem(f'global_load_dwordx4 v[{QR}:{QR+3}], v3, s[18:19]', 'q')
    k.vmem(f'global_load_dwordx4 v[{QR+4}:{QR+7}], v3, s[18:19] offset:768', 'q')
    k('s_mov_b64 exec, -1')
    k(f"""
    s_cmp_ge_u32 s2, 170
    s_cbranch_scc1 L_k2_norel1
    s_mul_i32 s54, s2, 13108
    s_lshr_b32 s54, s54, 16                ; kb = u // 5
    s_mul_i32 s55, s54, 5
    s_sub_u32 s55, s2, s55                 ; nb
    v_lshrrev_b32 v20, 4, v2
    v_mul_u32_u24 v20, 1280, v20
    v_and_b32 v21, 15, v2
    v_lshl_add_u32 v20, v21, 4, v20
    s_cmp_ge_u32 s54, 10
    s_cselect_b32 s56, s52, s50
    s_cselect_b32 s57, s53, s51
    s_cselect_b32 s58, 10, 0
    s_sub_u32 s58, s54, s58
    s_lshl_b32 s58, s58, 6
    s_lshl_b32 s59, s14, 4
    s_add_u32 s58, s58, s59
    s_mul_i32 s58, s58, 1280
    s_lshl_b32 s59, s55, 8
    s_add_u32 s58, s58, s59
    s_add_u32 s56, s56, s58
    s_addc_u32 s57, s57, 0
    s_lshl_b32 s60, s14, 12
    s_add_u32 s60, s60, {K2_ROFF}
    """)
    for j in range(4):
        k(f's_add_u32 m0, s60, {j*1024}')
        k('s_nop 0')
        k(f'global_load_lds_dwordx4 v20, s[56:57]')
        k('s_add_u32 s56, s56, 5120')
        k('s_addc_u32 s57, s57, 0')
    k.label('L_k2_norel1')
    k(f'''
    v_and_b32 v5, 15, v2                   ; l&15
    v_lshrrev_b32 v6, 4, v2                ; g
    v_lshlrev_b32 v7, 10, v6
    v_lshl_add_u32 v7, v5, 4, v7
    v_add_u32 v7, s17, v7
    v_mov_b32 v12, 0
    v_mov_b32 v13, 0
    v_mov_b32 v14, 0
    v_mov_b32 v15, 0
    ds_write_b128 v7, v[12:15] offset:768
    s_mov_b32 exec_hi, 0
    ds_write_b128 v7, v[12:15] offset:{4096+768}
    s_mov_b64 exec, -1
    s_lshl_b32 s26, s14, 11                ; 2w*1024
    v_add_u32 v8, s26, v3
    s_mul_i32 s26, s14, 1280
    s_add_u32 s26, s26, {K2_VOFF}
    v_add_u32 v9, s26, v3
    v_and_b32 v10, 3, v5
    v_lshlrev_b32 v10, 4, v10
    v_lshl_add_u32 v10, v6, 6, v10
    v_add_u32 v10, s26, v10
    s_sub_u32 s25, s25, 256
    v_lshlrev_b32 v11, 2, v6
    v_sub_u32 v11, v5, v11                 ; (l&15) - 4g
    v_cmp_le_i32 s[32:33], 0, v11
    v_cmp_le_i32 s[34:35], 1, v11
    v_cmp_le_i32 s[36:37], 2, v11
    v_cmp_le_i32 s[38:39], 3, v11
    v_mov_b32 v11, 0xff800000              ; -inf
    s_mov_b32 s40, {f32hex(LOG2E * 20 ** -0.5)}
    s_waitcnt lgkmcnt(0)
    ''')
    k("""
    s_cmp_ge_u32 s2, 170
    s_cbranch_scc1 L_k2_w0
    s_waitcnt vmcnt(4)
    s_branch L_k2_w1
    """)
    k.label('L_k2_w0')
    k('s_waitcnt vmcnt(0)')
    k.label('L_k2_w1')
    k.vm = []
    k('s_barrier')
    k.stamp(1)
    PD = 3
    def kread(kt):
        d = KF0 + (kt % 4) * 4
        k.lds(f'ds_read_b128 v[{d}:{d+3}], v8 offset:{kt*1024}', ('k', kt))
    for kt in range(PD):
        kread(kt)
    for kt in range(18):
        if kt + PD < 18:
            kread(kt + PD)
        k.wait_lg(('k', kt))
        d = KF0 + (kt % 4) * 4
        for a in range(2):
            if (a == 0 and kt == 17) or (a == 1 and kt == 0):
                continue
            s = S(a, kt)
            k(f'v_mfma_f32_16x16x32_bf16 v[{s}:{s+3}], v[{d}:{d+3}], v[{QR+4*a}:{QR+4*a+3}], 0')
    def vread(p):
        d = VF0 + (p % 4) * 8
        k.lds(f'ds_read_b128 v[{d}:{d+3}], v9 offset:{p*1280}', ('v', p))
        k.lds(f'ds_read_b128 v[{d+4}:{d+7}], v10 offset:{p*1280 + 1024}', ('v', p))
    for p in range(3):
        vread(p)
    k('s_nop 7')
    k('s_nop 1')
    k.stamp(2)
    for p in range(8):
        lb = k.newlabel('L_k2_v')
        k(f's_cmp_ge_i32 s25, {-32*p}')
        k(f's_cbranch_scc1 {lb}')
        for a in range(2):
            for kt in (2 * p, 2 * p + 1):
                if (a == 0 and kt == 17) or (a == 1 and kt == 0):
                    continue
                for r in range(4):
                    k(f'v_mov_b32 v{S(a,kt)+r}, v11')
        k.label(lb)
    for a in range(2):
        for r in range(4):
            s = S(a, a) + r
            k(f'v_cndmask_b32 v{s}, v{s}, v11, s[{32+2*r}:{33+2*r}]')
            s = S(a, a + 16) + r
            k(f'v_cndmask_b32 v{s}, v11, v{s}, s[{32+2*r}:{33+2*r}]')
    for a in range(2):
        regs = [S(a, kt) + r for kt in range(a, a + 17) for r in range(4)]
        m = 12 + a
        k(f'v_max3_f32 v{m}, v{regs[0]}, v{regs[1]}, v{regs[2]}')
        i = 3
        while i < len(regs):
            if i + 1 < len(regs):
                k(f'v_max3_f32 v{m}, v{m}, v{regs[i]}, v{regs[i+1]}')
                i += 2
            else:
                k(f'v_max_f32 v{m}, v{m}, v{regs[i]}')
                i += 1
    def xlane(op, r):
        k(f'''
        v_mov_b32 v16, v{r}
        s_nop 1
        v_permlane32_swap_b32 v16, v{r}
        s_nop 1
        {op} v{r}, v{r}, v16
        v_mov_b32 v16, v{r}
        s_nop 1
        v_permlane16_swap_b32 v16, v{r}
        s_nop 1
        {op} v{r}, v{r}, v16
        ''')
    for a in range(2):
        xlane('v_max_f32', 12 + a)
        k(f'v_mul_f32 v{12+a}, s40, v{12+a}')
    k.stamp(3)
    for a in range(2):
        k(f'v_mov_b32 v{14+a}, 0')
        for kt in range(a, a + 17):
            s = S(a, kt)
            for r in range(4):
                k(f'v_fma_f32 v{s+r}, v{s+r}, s40, -v{12+a}')
            for r in range(4):
                k(f'v_exp_f32 v{s+r}, v{s+r}')
            k('s_nop 0')
            k(f'v_add_f32 v17, v{s}, v{s+1}')
            k(f'v_add_f32 v18, v{s+2}, v{s+3}')
            k(f'v_add_f32 v17, v17, v18')
            k(f'v_add_f32 v{14+a}, v{14+a}, v17')
    for a in range(2):
        for p in range(9):
            s0, s1 = S(a, 2 * p), S(a, 2 * p + 1)
            if a == 1 and p == 0:
                k(f'v_mov_b32 v{s0}, 0')
                k(f'v_mov_b32 v{s0+1}, 0')
            else:
                k(f'v_cvt_pk_bf16_f32 v{s0}, v{s0}, v{s0+1}')
                k(f'v_cvt_pk_bf16_f32 v{s0+1}, v{s0+2}, v{s0+3}')
            if a == 0 and p == 8:
                k(f'v_mov_b32 v{s0+2}, 0')
                k(f'v_mov_b32 v{s0+3}, 0')
            else:
                k(f'v_cvt_pk_bf16_f32 v{s0+2}, v{s1}, v{s1+1}')
                k(f'v_cvt_pk_bf16_f32 v{s0+3}, v{s1+2}, v{s1+3}')
    for a in range(2):
        xlane('v_add_f32', 14 + a)
        k(f'v_rcp_f32 v{14+a}, v{14+a}')
    k.stamp(4)
    for p in range(9):
        if p + 3 < 9:
            vread(p + 3)
        k.wait_lg(('v', p))
        d = VF0 + (p % 4) * 8
        for a in range(2):
            for dt in range(2):
                o = OA + (a * 2 + dt) * 4
                cin = '0' if p == 0 else f'v[{o}:{o+3}]'
                s0 = S(a, 2 * p)
                k(f'v_mfma_f32_16x16x32_bf16 v[{o}:{o+3}], v[{d+4*dt}:{d+4*dt+3}], v[{s0}:{s0+3}], {cin}')
    k(f'''
    s_add_u32 s26, s13, s24
    s_lshr_b32 s26, s26, 4
    s_mul_i32 s26, s26, 69632
    s_add_u32 s26, s26, {OF}
    s_add_u32 s18, s6, s26
    s_addc_u32 s19, s7, 0
    s_mul_i32 s27, s12, 20
    v_lshl_add_u32 v20, v6, 2, s27
    v_add_u32 v22, 16, v20
    v_lshrrev_b32 v21, 3, v20
    v_lshlrev_b32 v21, 8, v21
    v_and_b32 v20, 4, v20
    v_lshl_add_u32 v21, v20, 1, v21
    v_lshl_add_u32 v20, v5, 4, v21
    v_lshrrev_b32 v21, 3, v22
    v_lshlrev_b32 v21, 8, v21
    v_and_b32 v22, 4, v22
    v_lshl_add_u32 v21, v22, 1, v21
    v_lshl_add_u32 v21, v5, 4, v21
    v_add_u32 v22, 69632, v20
    v_add_u32 v23, 69632, v21
    s_nop 3
    ''')
    for a in range(2):
        for dt in range(2):
            o = OA + (a * 2 + dt) * 4
            for r in range(4):
                k(f'v_mul_f32 v{o+r}, v{o+r}, v{14+a}')
            k(f'v_cvt_pk_bf16_f32 v{o}, v{o}, v{o+1}')
            k(f'v_cvt_pk_bf16_f32 v{o+1}, v{o+2}, v{o+3}')
    for a in range(2):
        o = OA + (a * 2) * 4
        k.vmem(f'global_store_dwordx2 v{20+2*a}, v[{o}:{o+1}], s[18:19]')
    k('s_mov_b64 exec, 0xffff')
    for a in range(2):
        o = OA + (a * 2 + 1) * 4
        k.vmem(f'global_store_dwordx2 v{21+2*a}, v[{o}:{o+1}], s[18:19]')
    k('s_mov_b64 exec, -1')
    k(f"""
    s_cmp_ge_u32 s2, 170
    s_cbranch_scc1 L_k2_norel2
    s_waitcnt vmcnt(0)
    s_barrier
    v_lshrrev_b32 v20, 2, v5               ; i = (l&15)>>2
    v_lshl_add_u32 v20, v6, 3, v20         ; row = 8g + i
    v_lshlrev_b32 v20, 8, v20
    v_and_b32 v21, 3, v2
    v_lshl_add_u32 v20, v21, 3, v20
    s_lshl_b32 s61, s14, 6
    s_add_u32 s61, s61, {K2_ROFF}
    v_add_u32 v20, s61, v20
    """)
    for nt in range(2):
        for ks in range(2):
            d = 208 + (nt * 2 + ks) * 4
            k(f'ds_read_b64_tr_b16 v[{d}:{d+1}], v20 offset:{ks*32*256 + nt*32}')
            k(f'ds_read_b64_tr_b16 v[{d+2}:{d+3}], v20 offset:{ks*32*256 + 4*256 + nt*32}')
    k(f"""
    s_lshl_b32 s62, s55, 3
    s_lshl_b32 s63, s14, 1
    s_add_u32 s62, s62, s63
    s_mul_i32 s62, s62, 68
    s_lshl_b32 s63, s54, 1
    s_add_u32 s62, s62, s63
    s_lshl_b32 s62, s62, 10
    s_add_u32 s62, s62, {W3F}
    s_add_u32 s56, s6, s62
    s_addc_u32 s57, s7, 0
    v_add_u32 v21, {68*1024}, v3
    s_waitcnt lgkmcnt(0)
    """)
    for nt in range(2):
        for ks in range(2):
            d = 208 + (nt * 2 + ks) * 4
            k(f'global_store_dwordx4 v{21 if nt else 3}, v[{d}:{d+3}], s[56:57] offset:{ks*1024}')
    k('s_nop 1')
    k.label('L_k2_norel2')
    k.stamp(5)
    k('s_waitcnt vmcnt(0)')
    k.stamp(6)
    if 'ts' in EXP: k('s_memrealtime s[86:87]')
    k.stamp_flush(9, 6, base=0x3200000)
    k.label('L_k2_done')
    k('s_endpgm')
    return k.text(), kernel_desc('attn_kernel', 256, 100, 256)

K3_NS = 8
K3_PSTR = 336
K3_LDS = 4 * 64 * K3_PSTR
K3_AC0 = 16; K3_AV = 130; K3_WV = 120
def k3_body(k, nks):
    AC0 = K3_AC0; AV = K3_AV; WV = K3_WV
    NS = K3_NS
    def reg(b, i):
        j = (b % NS) * 36 + i * 4
        if j < 256:
            return f'a[{j}:{j+3}]'
        return f'v[{136 + j - 256}:{136 + j - 256 + 3}]'
    def ops(b):
        o = []
        for t in range(5):
            def f(t=t):
                k.vmem(f'global_load_dwordx4 {reg(b, 4 + t)}, v{WV+t}, s[18:19]', ('L', b))
            o.append(f)
        for mt in range(4):
            def f(mt=mt):
                k.vmem(f'global_load_dwordx4 {reg(b, mt)}, v{AV+mt}, s[16:17]', ('L', b))
            o.append(f)
        def f():
            k('s_add_u32 s16, s16, 1024')
            k('s_addc_u32 s17, s17, 0')
            k('s_add_u32 s18, s18, 1024')
            k('s_addc_u32 s19, s19, 0')
        o.append(f)
        return o
    for b0 in range(NS - 1):
        for f in ops(b0):
            f()
    k.stamp(1)
    for b in range(nks):
        if b == 2: k.stamp(2)
        if b == 10: k.stamp(3)
        pend = ops(b + NS - 1) if b + NS - 1 < nks else []
        k.wait_vm(('L', b))
        for t in range(5):
            for mt in range(4):
                a = AC0 + (mt * 5 + t) * 4
                cin = '0' if b == 0 else f'v[{a}:{a+3}]'
                k(f'v_mfma_f32_16x16x32_bf16 v[{a}:{a+3}], {reg(b, 4 + t)}, {reg(b, mt)}, {cin}')
                if mt % 2 == 1 and pend:
                    pend.pop(0)()
        while pend:
            pend.pop(0)()
    k('s_nop 7')
    k('s_nop 1')

def gen_k3():
    k = K()
    k.raw(kernel_header('gemm2_kernel'))
    AC0 = K3_AC0; AV = K3_AV; WV = K3_WV
    k(f"""
    s_cmp_ge_u32 s2, 256
    s_cbranch_scc1 L_k3_done
    """)
    k.stamp(0)
    if 'ts' in EXP: k('s_memrealtime s[84:85]')
    k(f"""
    s_load_dwordx2 s[4:5], s[0:1], 0       ; x
    s_load_dwordx2 s[8:9], s[0:1], 16      ; wo
    s_load_dwordx2 s[10:11], s[0:1], 48    ; w_down
    s_load_dwordx2 s[24:25], s[0:1], 56    ; out
    s_load_dwordx2 s[6:7], s[0:1], 72      ; ws
    """)
    xn = 2
    for cand in (1, 2, 4, 8):
        if f'xn{cand}' in EXP: xn = cand
    xm = 8 // xn
    lm = {1:0,2:1,4:2,8:3}
    k(f"""
    s_and_b32 s3, s2, 7
    s_lshr_b32 s15, s2, 3
    s_and_b32 s12, s3, {xm-1}
    s_lshl_b32 s12, s12, {5 - lm[xm]}
    s_and_b32 s13, s15, {32//xm - 1}
    s_add_u32 s12, s12, s13                ; m tile (0..31)
    s_lshr_b32 s13, s3, {lm[xm]}
    s_lshl_b32 s13, s13, {3 - lm[xn]}
    s_lshr_b32 s15, s15, {5 - lm[xm]}
    s_add_u32 s13, s13, s15                ; n tile (0..7)
    s_mul_i32 s13, s13, 160                ; n0*2 bytes
    v_lshrrev_b32 v1, 6, v0
    v_and_b32 v2, 63, v0
    s_nop 0
    v_readfirstlane_b32 s14, v1            ; wave
    v_and_b32 v3, 15, v2                   ; l&15
    v_lshrrev_b32 v4, 4, v2                ; g
    """)
    k("""
    v_lshlrev_b32 v5, 4, v2                ; lane*16
    v_mov_b32 v120, v5
    v_add_u32 v121, 69632, v5
    v_add_u32 v122, 139264, v5
    v_add_u32 v123, 208896, v5
    v_add_u32 v124, 278528, v5
    s_waitcnt lgkmcnt(0)
    """)
    k(f"""
    s_mul_i32 s15, s14, {17*1024}
    s_mul_i32 s22, s12, {4*69632}
    s_add_u32 s22, s22, s15
    s_add_u32 s22, s22, {HF}
    s_add_u32 s16, s6, s22
    s_addc_u32 s17, s7, 0
    s_mul_i32 s22, s13, 2176
    s_add_u32 s22, s22, s15
    s_add_u32 s22, s22, {W3F}
    s_add_u32 s18, s6, s22
    s_addc_u32 s19, s7, 0
    v_mov_b32 v{AV}, v5
    v_add_u32 v{AV+1}, 69632, v5
    v_add_u32 v{AV+2}, {2*69632}, v5
    v_add_u32 v{AV+3}, {3*69632}, v5
    """)
    k3_body(k, 17)
    k.label('L_k3_red')
    k.stamp(4)
    k.vm = []; k.lg = []
    PW = 64 * K3_PSTR
    k('s_lshl_b32 s12, s12, 6                 ; row0')
    for r in range(3):
        k(f"""
        v_add_u32 v6, {256*r}, v0
        v_mul_u32_u24 v7, 6554, v6
        v_lshrrev_b32 v7, 16, v7           ; m
        v_mul_u32_u24 v8, 10, v7
        v_sub_u32 v8, v6, v8               ; c
        v_add_u32 v9, s12, v7
        v_mul_u32_u24 v9, 1280, v9
        v_lshl_add_u32 v9, v8, 4, v9
        v_add_u32 v{96+r}, s13, v9
        v_mul_u32_u24 v9, {K3_PSTR}, v7
        v_lshl_add_u32 v{100+r}, v8, 5, v9
        v_add_u32 v{104+r}, {2*PW}, v{100+r}
        """)
    k('v_cmp_gt_u32 vcc, 128, v0')
    k('s_nop 3')
    k('s_mov_b64 s[26:27], vcc')
    for r in range(2):
        k.vmem(f'global_load_dwordx4 v[{108+4*r}:{111+4*r}], v{96+r}, s[4:5]', 'x')
    k('s_mov_b64 exec, s[26:27]')
    k('s_cbranch_execz L_k3_nox')
    k.vmem(f'global_load_dwordx4 v[116:119], v98, s[4:5]', 'x')
    k.label('L_k3_nox')
    k('s_mov_b64 exec, -1')
    k('s_barrier')
    k(f"""
    s_mul_i32 s22, s14, {PW}
    v_mul_u32_u24 v7, {K3_PSTR}, v3
    v_lshl_add_u32 v7, v4, 4, v7
    v_add_u32 v7, s22, v7
    """)
    for mt in range(4):
        for t in range(5):
            a = AC0 + (mt * 5 + t) * 4
            k.lds(f'ds_write_b128 v7, v[{a}:{a+3}] offset:{mt*16*K3_PSTR + t*64}')
    k.wait_lg_all()
    k('s_barrier')
    k.stamp(5)
    for r in range(3):
        for w in range(4):
            for hf in range(2):
                d = 120 + r * 32 + (w * 2 + hf) * 4
                k.lds(f'ds_read_b128 v[{d}:{d+3}], v{(100 if w < 2 else 104) + r} offset:{(w&1)*PW + hf*16}', ('r', r))
    k.wait_vm_all()
    for r in range(3):
        k.wait_lg(('r', r))
        p0 = 120 + r * 32
        for e in range(0, 8, 2):
            k(f'v_pk_add_f32 v[{p0+e}:{p0+e+1}], v[{p0+e}:{p0+e+1}], v[{p0+8+e}:{p0+9+e}]')
            k(f'v_pk_add_f32 v[{p0+16+e}:{p0+17+e}], v[{p0+16+e}:{p0+17+e}], v[{p0+24+e}:{p0+25+e}]')
        for e in range(0, 8, 2):
            k(f'v_pk_add_f32 v[{p0+e}:{p0+e+1}], v[{p0+e}:{p0+e+1}], v[{p0+16+e}:{p0+17+e}]')
        for h in range(4):
            a0, a1 = p0 + 2 * h, p0 + 2 * h + 1
            xr = 108 + 4 * r + h
            k(f"""
            v_lshlrev_b32 v12, 16, v{xr}
            v_and_b32 v13, 0xffff0000, v{xr}
            v_add_f32 v{a0}, v{a0}, v12
            v_add_f32 v{a1}, v{a1}, v13
            v_cvt_pk_bf16_f32 v{xr}, v{a0}, v{a1}
            """)
        if r == 2:
            k('s_mov_b64 exec, s[26:27]')
            k('s_cbranch_execz L_k3_nost')
        k.vmem(f'global_store_dwordx4 v{96+r}, v[{108+4*r}:{111+4*r}], s[24:25]')
    k.label('L_k3_nost')
    k('s_waitcnt vmcnt(0)')
    k('s_mov_b64 exec, -1')
    k.stamp(6)
    if 'ts' in EXP: k('s_memrealtime s[86:87]')
    k.stamp_flush(9, 6, base=0x3100000)
    k.label('L_k3_done')
    k('s_endpgm')
    return k.text(), kernel_desc('gemm2_kernel', 216 + 256, 100, 216)

HEADER = open('parallel_sum__sliding_block__swiglu_ffn__prompt.s.ref').read().split('; Override launch')[0]

def main(path):
    parts = [gen_k1(), gen_k2(), gen_k3()]
    s = HEADER
    s += f'; @launch kernel=gemm1_kernel grid=(256,1,1) block=(256,1,1) lds={K1_LDS}\n'
    s += f'; @launch kernel=attn_kernel grid=(512,1,1) block=(256,1,1) lds={K2_LDS}\n'
    s += f'; @launch kernel=gemm2_kernel grid=(256,1,1) block=(256,1,1) lds={K3_LDS}\n'
    s += '.amdgcn_target "amdgcn-amd-amdhsa--gfx950"\n.text\n'
    for t, d in parts:
        s += t
    s += '.section .rodata,"a"\n'
    for t, d in parts:
        s += '.p2align 6\n' + d
    open(path, 'w').write(s)

if __name__ == '__main__':
    main(sys.argv[1] if len(sys.argv) > 1 else 'parallel_sum__sliding_block__swiglu_ffn__prompt.s')
```
